```python
import torch

def _softmax(x, axis=-1):
    return torch.softmax(x, dim=axis)

def _gelu(x):
    return torch.nn.functional.gelu(x, approximate='tanh')

def _silu(x):
    return torch.nn.functional.silu(x)

def _sigmoid(x):
    return torch.sigmoid(x)

def _layernorm(x, axis=-1, eps=1e-05):
    m = x.mean(dim=axis, keepdim=True)
    v = x.var(dim=axis, keepdim=True, unbiased=False)
    return (x - m) / torch.sqrt(v + eps)

def _scatter_add(tgt, idx, src, axis=0):
    return tgt.clone().index_add_(axis, idx, src)

def _segment_sum(src, seg, n):
    out = torch.zeros((n,) + src.shape[1:], dtype=src.dtype)
    return out.index_add_(0, seg, src)

def _pad(x, pw):
    flat = tuple((v for pair in reversed(pw) for v in pair))
    return torch.nn.functional.pad(x, flat)
kernel_name = 'standalone__tree_speculative_verify_tree_attention_over_candidate_token_tree__decode'

def setup_inputs():

    _w = lambda a: (lambda t: t.to(torch.bfloat16) if t.is_floating_point() else t)(torch.as_tensor(a))
    B, Hq, Hkv, T, C, D = (4, 32, 4, 1, 8192, 128)
    tree_mask = torch.zeros((B, T, T), dtype=float)
    for b in range(B):
        parent = torch.zeros(T, dtype=torch.int64)
        for i in range(1, T):
            parent[i] = int(torch.randint(0, i, (1,)).item())
        for i in range(T):
            j = i
            tree_mask[b, i, j] = 1.0
            while j > 0:
                j = parent[j]
                tree_mask[b, i, j] = 1.0
    return {'q': _w((lambda *s: torch.randn(*s, dtype=torch.bfloat16) * 0.8)(B, Hq, T, D)), 'k_cache': _w((lambda *s: torch.randn(*s, dtype=torch.bfloat16) * 0.8)(B, Hkv, C, D)), 'v_cache': _w((lambda *s: torch.randn(*s, dtype=torch.bfloat16) * 0.05)(B, Hkv, C, D)), 'k_tree': _w((lambda *s: torch.randn(*s, dtype=torch.bfloat16) * 0.8)(B, Hkv, T, D)), 'v_tree': _w((lambda *s: torch.randn(*s, dtype=torch.bfloat16) * 0.05)(B, Hkv, T, D)), 'tree_mask': _w(tree_mask)}

def reference(q, k_cache, v_cache, k_tree, v_tree, tree_mask):
    B, Hq, T, D = q.shape
    Hkv, C = (k_cache.shape[1], k_cache.shape[2])
    rep = Hq // Hkv
    kc = (lambda x, n, axis: torch.repeat_interleave(x, n, dim=axis))(k_cache, rep, axis=1)
    vc = (lambda x, n, axis: torch.repeat_interleave(x, n, dim=axis))(v_cache, rep, axis=1)
    kt = (lambda x, n, axis: torch.repeat_interleave(x, n, dim=axis))(k_tree, rep, axis=1)
    vt = (lambda x, n, axis: torch.repeat_interleave(x, n, dim=axis))(v_tree, rep, axis=1)
    k = torch.concatenate([kc, kt], axis=2)
    v = torch.concatenate([vc, vt], axis=2)
    scale = D ** (-0.5)
    scores = torch.einsum('bhqd,bhkd->bhqk', q, k) * scale
    ctx_mask = torch.ones((B, 1, T, C), dtype=scores.dtype)
    tm = tree_mask[:, None, :, :].clone()
    full_mask = torch.concatenate([ctx_mask, tm], axis=-1)
    scores = scores + (1.0 - full_mask) * -1000000000.0
    p = _softmax(scores, axis=-1)
    return torch.einsum('bhqk,bhkd->bhqd', p, v)
```

```python
KNAME = "standalone__tree_speculative_verify_tree_attention_over_candidate_token_tree__decode_kernel"
HEADER = """; Kernarg layout for this problem (72 bytes, ptrs only, base s[0:1]):
"""

class Asm:
    def __init__(self):
        self.lines = []
    def __call__(self, s=""):
        for l in s.split("\n"):
            self.lines.append(l)
    def text(self):
        return "\n".join(self.lines) + "\n"

def kernel_begin(a, name):
    a(f".globl {name}")
    a(".p2align 8")
    a(f".type {name},@function")
    a(f"{name}:")

def descriptor(name, vgpr, accum, sgpr=102):
    return f""".amdhsa_kernel {name}
  .amdhsa_next_free_vgpr {vgpr}
  .amdhsa_next_free_sgpr {sgpr}
  .amdhsa_accum_offset {accum}
  .amdhsa_group_segment_fixed_size 0
  .amdhsa_kernarg_size 72
  .amdhsa_user_sgpr_count 2
  .amdhsa_user_sgpr_kernarg_segment_ptr 1
  .amdhsa_system_sgpr_workgroup_id_x 1
.end_amdhsa_kernel
"""
```

```python
import sys, math, struct
sys.path.insert(0, "gen")
from common import *

def f2u(x): return struct.unpack("<I", struct.pack("<f", x))[0]
LOG2E = 1.4426950408889634
SCALE = 128 ** -0.5
C_SL = SCALE * LOG2E

ML_BASE = 1 << 20
LDS_M = 0
LDS_O = 256
ESTR = 1088
WSTR = 4 * ESTR
LDS_SIZE = LDS_O + 4 * WSTR

def wave_allreduce(a, op, v, t, rows_only=False):
    for ctl in ("quad_perm:[1,0,3,2]", "quad_perm:[2,3,0,1]", "row_half_mirror", "row_mirror"):
        a("s_nop 1")
        a(f"{op}_dpp {v}, {v}, {v} {ctl} row_mask:0xf bank_mask:0xf")
    cross_rows(a, op, v, t)

def cross_rows(a, op, v, t):
    a(f"v_mov_b32 {t}, {v}")
    a("s_nop 1")
    a(f"v_permlane16_swap_b32 {t}, {v}")
    a("s_nop 1")
    a(f"{op} {v}, {v}, {t}")
    a(f"v_mov_b32 {t}, {v}")
    a("s_nop 1")
    a(f"v_permlane32_swap_b32 {t}, {v}")
    a("s_nop 1")
    a(f"{op} {v}, {v}, {t}")

def consumer_prefetch(a, R):
    pass

def gen(mode="2k", kfl="", vfl="", W=8, dbg=False):
    a = Asm()
    a(HEADER.rstrip("\n"))
    if mode == "2k":
        a(f"; @launch kernel={KNAME} grid=(256,1,1) block=(256,1,1) lds={LDS_SIZE}")
        a(f"; @launch kernel=combine_kernel grid=(256,1,1) block=(64,1,1) lds=0")
    a('.amdgcn_target "amdgcn-amd-amdhsa--gfx950"')
    a(".text")
    kernel_begin(a, KNAME)
    a("s_cmp_ge_u32 s2, 256")
    a("s_cbranch_scc1 L_end")
    a("s_load_dwordx16 s[4:19], s[0:1], 0")
    a("s_load_dwordx2 s[20:21], s[0:1], 64")
    a("v_lshrrev_b32 v1, 6, v0")
    a("v_and_b32 v2, 63, v0")
    a("v_readfirstlane_b32 s3, v1")
    a("v_and_b32 v3, 15, v2")
    a("v_lshrrev_b32 v4, 4, v2")
    a("v_and_b32 v5, 3, v3")
    a("v_lshlrev_b32 v5, 10, v5")
    a("v_lshrrev_b32 v6, 2, v3")
    a("v_lshl_add_u32 v5, v6, 8, v5")
    a("v_lshl_add_u32 v5, v4, 4, v5")
    a("v_lshlrev_b32 v6, 4, v2")
    a("v_and_b32 v7, 7, v3")
    a("v_lshlrev_b32 v7, 8, v7")
    a("v_lshl_add_u32 v7, v4, 4, v7")
    a("s_lshl_b32 s22, s2, 17")
    a("s_lshr_b32 s52, s2, 4")
    a("s_and_b32 s53, s2, 15")
    a("s_lshl_b32 s23, s3, 15")
    a("s_mov_b32 s33, s23")
    a("s_lshl_b32 s54, s52, 11")
    a("s_waitcnt lgkmcnt(0)")
    a("s_add_u32 s32, s4, s54")
    a("s_addc_u32 s41, s5, 0")
    a("s_mov_b32 s40, s32")
    a("s_mov_b32 s42, 2048")
    a("s_mov_b32 s43, 0x20000")
    a("s_add_u32 s24, s6, s22")
    a("s_addc_u32 s25, s7, 0")
    a("s_mov_b32 s26, 0x20000")
    a("s_mov_b32 s27, 0x20000")
    a("s_add_u32 s28, s8, s22")
    a("s_addc_u32 s29, s9, 0")
    a("s_mov_b32 s30, 0x20000")
    a("s_mov_b32 s31, 0x20000")
    QB = 8
    for i in range(4):
        a(f"buffer_load_dwordx4 v[{QB+4*i}:{QB+4*i+3}], v7, s[40:43], 0 offen offset:{i*64}")
    VB = 128
    seq = [("k", i) for i in range(32)] + [("v", i) for i in range(32)]
    issued = [0]
    def issue(n):
        for _ in range(n):
            if issued[0] >= len(seq): return
            kind, idx = seq[issued[0]]
            i = idx & 3
            if kind == "k":
                a(f"buffer_load_dwordx4 a[{idx*4}:{idx*4+3}], v5, s[24:27], s23 offen offset:{i*64}{kfl}")
                if i == 3: a("s_add_u32 s23, s23, 4096")
            else:
                a(f"buffer_load_dwordx4 v[{VB+idx*4}:{VB+idx*4+3}], v6, s[28:31], s33 offen offset:{i*1024}{vfl}")
                if i == 3: a("s_add_u32 s33, s33, 4096")
            issued[0] += 1
    extra = [0]
    issue(4 * W)
    a("s_mov_b32 s36, s20")
    a("s_mov_b32 s37, s21")
    a("s_mov_b32 s38, 0x10000000")
    a("s_mov_b32 s39, 0x20000")
    a(f"s_mov_b32 s44, {f2u(C_SL):#x}")
    a("s_mov_b32 s45, 0x05040100")
    a("s_mov_b32 s46, 0x07060302")
    SB = 24
    for t in range(8):
        n_after = issued[0] - (4 * t + 4)
        a(f"s_waitcnt vmcnt({min(n_after,63)})")
        for i in range(4):
            c = "0" if i == 0 else f"v[{SB+4*t}:{SB+4*t+3}]"
            a(f"v_mfma_f32_16x16x32_bf16 v[{SB+4*t}:{SB+4*t+3}], a[{(t*4+i)*4}:{(t*4+i)*4+3}], v[{QB+4*i}:{QB+4*i+3}], {c}")
        issue(4)
    issue(64)
    a("s_nop 7")
    M = "v56"; T = "v57"
    a(f"v_max3_f32 {M}, v{SB}, v{SB+1}, v{SB+2}")
    r = 3
    while r < 32:
        if r + 1 < 32:
            a(f"v_max3_f32 {M}, {M}, v{SB+r}, v{SB+r+1}"); r += 2
        else:
            a(f"v_max_f32 {M}, {M}, v{SB+r}"); r += 1
    cross_rows(a, "v_max_f32", M, T)
    a("v_and_b32 v58, 7, v3")
    a("v_lshlrev_b32 v58, 4, v58")
    a("s_lshl_b32 s47, s3, 2")
    a("v_add_u32 v59, s47, v58")
    a("v_cmp_gt_u32 vcc, 8, v2")
    a("s_and_saveexec_b64 s[48:49], vcc")
    a(f"ds_write_b32 v59, {M} offset:{LDS_M}")
    a("s_mov_b64 exec, s[48:49]")
    a("s_waitcnt lgkmcnt(0)")
    a("s_barrier")
    a(f"ds_read_b128 v[60:63], v58 offset:{LDS_M}")
    a("s_waitcnt lgkmcnt(0)")
    a("v_max3_f32 v60, v60, v61, v62")
    a(f"v_max_f32 {M}, v60, v63")
    a(f"v_mul_f32 {M}, s44, {M}")
    a("s_nop 0")
    for r in range(32):
        a(f"v_fma_f32 v{SB+r}, v{SB+r}, s44, -{M}")
    for r in range(32):
        a(f"v_exp_f32 v{SB+r}, v{SB+r}")
    a("s_nop 0")
    L = "v57"; T2 = "v58"
    a(f"v_add_f32 v60, v{SB}, v{SB+1}")
    a(f"v_add_f32 v61, v{SB+2}, v{SB+3}")
    for r in range(4, 32, 2):
        a(f"v_add_f32 v60, v60, v{SB+r}")
        a(f"v_add_f32 v61, v61, v{SB+r+1}")
    a(f"v_add_f32 {L}, v60, v61")
    cross_rows(a, "v_add_f32", L, T2)
    PL, PH = 64, 80
    for t in range(8):
        a(f"v_cvt_pk_bf16_f32 v{PL+2*t}, v{SB+4*t}, v{SB+4*t+1}")
        a(f"v_cvt_pk_bf16_f32 v{PL+2*t+1}, v{SB+4*t+2}, v{SB+4*t+3}")
    a("v_cmp_gt_u32 vcc, 8, v3")
    a("s_nop 1")
    for r in range(16):
        a(f"v_cndmask_b32 v{PH+r}, v{PL+r}, 0, vcc") if False else None
    a("v_cndmask_b32 v60, 0, -1, vcc")
    a("v_not_b32 v61, v60")
    for r in range(16):
        a(f"v_and_b32 v{PH+r}, v61, v{PL+r}")
    for r in range(16):
        a(f"v_and_b32 v{PL+r}, v60, v{PL+r}")
    a("s_lshl_b32 s47, s52, 12")
    a("s_lshl_b32 s50, s53, 5")
    a("s_add_u32 s47, s47, s50")
    a("s_lshl_b32 s50, s3, 3")
    a("s_add_u32 s47, s47, s50")
    a(f"s_add_u32 s47, s47, {ML_BASE}")
    a("v_lshlrev_b32 v59, 9, v2")
    a(f"v_mov_b32 v62, {M}")
    a(f"v_mov_b32 v63, {L}")
    a("v_cmp_gt_u32 vcc, 8, v2")
    a("s_and_saveexec_b64 s[48:49], vcc")
    a("buffer_store_dwordx2 v[62:63], v59, s[36:39], s47 offen sc0 sc1")
    a("s_mov_b64 exec, s[48:49]")
    nst = 1
    AC = 96
    TP = 112
    for u in range(4):
        rem = 32 - 8 * (u + 1)
        a(f"s_waitcnt vmcnt({rem + nst})")
        first = (u == 0)
        ops = []
        for ep in range(4):
            for half in range(2):
                ops.append((ep, half))
        def perms(k):
            ep, half = ops[k]
            e = ep + 4 * half
            dw, hi = e >> 1, e & 1
            sel = "s46" if hi else "s45"
            tb = TP + 4 * (k & 3)
            for qq in range(4):
                r0 = VB + (8 * u + 2 * qq) * 4 + dw
                r1 = VB + (8 * u + 2 * qq + 1) * 4 + dw
                a(f"v_perm_b32 v{tb+qq}, v{r1}, v{r0}, {sel}")
        def mfma(k):
            ep, half = ops[k]
            tb = TP + 4 * (k & 3)
            pb = (PH if half else PL) + 4 * u
            c = "0" if (first and half == 0) else f"v[{AC+4*ep}:{AC+4*ep+3}]"
            a(f"v_mfma_f32_16x16x32_bf16 v[{AC+4*ep}:{AC+4*ep+3}], v[{tb}:{tb+3}], v[{pb}:{pb+3}], {c}")
        perms(0)
        perms(1)
        for k in range(8):
            mfma(k)
            if k + 2 < 8: perms(k + 2)
    a("s_mul_i32 s47, s3, %d" % WSTR)
    a("v_add_u32 v60, s47, v6")
    a("v_and_b32 v61, 3, v2")
    a(f"v_mul_u32_u24 v61, {ESTR}, v61")
    a("v_lshrrev_b32 v62, 3, v2")
    a("v_and_b32 v63, 4, v2")
    a("v_lshl_add_u32 v63, v63, 1, v62")
    a("s_lshl_b32 s47, s3, 4")
    a("v_add_u32 v63, s47, v63")
    a("v_lshl_add_u32 v61, v63, 4, v61")
    a("v_and_b32 v63, 7, v2")
    a("v_lshlrev_b32 v63, 4, v63")
    a("v_lshl_add_u32 v63, v62, 13, v63")
    a("s_lshr_b32 s47, s3, 1")
    a("s_lshl_b32 s47, s47, 12")
    a("s_and_b32 s50, s3, 1")
    a("s_lshl_b32 s50, s50, 7")
    a("s_add_u32 s47, s47, s50")
    a("s_lshl_b32 s50, s52, 16")
    a("s_add_u32 s47, s47, s50")
    a("s_lshl_b32 s50, s53, 8")
    a("s_add_u32 s47, s47, s50")
    a("s_nop 4")
    for ep in range(4):
        a(f"ds_write_b128 v60, v[{AC+4*ep}:{AC+4*ep+3}] offset:{LDS_O+ep*ESTR}")
    a("s_waitcnt lgkmcnt(0)")
    a("s_barrier")
    for w in range(4):
        a(f"ds_read_b128 v[{112+4*w}:{112+4*w+3}], v61 offset:{LDS_O+w*WSTR}")
    a("s_waitcnt lgkmcnt(2)")
    for r in range(4): a(f"v_add_f32 v{112+r}, v{112+r}, v{116+r}")
    a("s_waitcnt lgkmcnt(0)")
    for r in range(4): a(f"v_add_f32 v{120+r}, v{120+r}, v{124+r}")
    for r in range(4): a(f"v_add_f32 v{112+r}, v{112+r}, v{120+r}")
    a("buffer_store_dwordx4 v[112:115], v63, s[36:39], s47 offen sc0 sc1")
    a("L_end:")
    a("s_endpgm")

    if mode == "2k":
        kernel_begin(a, "combine_kernel")
        a("s_cmp_ge_u32 s2, 256")
        a("s_cbranch_scc1 L_end2")
        a("s_load_dwordx16 s[4:19], s[0:1], 0")
        a("s_load_dwordx2 s[20:21], s[0:1], 64")
        a("s_lshr_b32 s52, s2, 4")
        a("s_and_b32 s53, s2, 15")
        combine_body(a)
        a("L_end2:")
        a("s_endpgm")
    a('.section .rodata,"a"')
    a(".p2align 6")
    a(descriptor(KNAME, 384, 256))
    if mode == "2k":
        a(".p2align 6")
        a(descriptor("combine_kernel", 64, 64))
    return a.text()

def combine_body(a):
    a("s_lshr_b32 s54, s53, 1")
    a("s_and_b32 s55, s53, 1")
    a("s_lshl_b32 s56, s52, 3")
    a("s_add_u32 s56, s56, s54")
    a("v_and_b32 v1, 32, v0")
    a("v_and_b32 v2, 4, v0")
    a("v_lshl_add_u32 v1, v2, 2, v1")
    a("v_and_b32 v2, 3, v0")
    a("v_lshl_add_u32 v1, v2, 2, v1")
    a("v_bfe_u32 v2, v0, 3, 2")
    a("v_add_u32 v1, v1, v2")
    a("v_lshlrev_b32 v1, 2, v1")
    a("v_lshlrev_b32 v2, 3, v0")
    a("v_lshlrev_b32 v3, 2, v0")
    a("v_lshlrev_b32 v4, 1, v0")
    a("v_mov_b32 v5, 0")
    a("s_waitcnt lgkmcnt(0)")
    a("s_mov_b32 s36, s20")
    a("s_mov_b32 s37, s21")
    a("s_mov_b32 s38, 0x10000000")
    a("s_mov_b32 s39, 0x20000")
    a("s_lshl_b32 s57, s56, 9")
    a(f"s_add_u32 s57, s57, {ML_BASE}")
    a("buffer_load_dwordx2 v[6:7], v2, s[36:39], s57 offen sc1")
    a("s_mov_b32 s24, s4")
    a("s_mov_b32 s25, s5")
    a("s_mov_b32 s26, 32768")
    a("s_mov_b32 s27, 0x20000")
    a("s_lshl_b32 s58, s56, 8")
    a("buffer_load_dword v8, v3, s[24:27], s58 offen")
    a("s_mov_b32 s28, s10")
    a("s_mov_b32 s29, s11")
    a("s_mov_b32 s30, 4096")
    a("s_mov_b32 s31, 0x20000")
    a("s_lshl_b32 s59, s52, 8")
    a("buffer_load_dword v9, v3, s[28:31], s59 offen")
    a("s_mov_b32 s40, s12")
    a("s_mov_b32 s41, s13")
    a("s_mov_b32 s42, 4096")
    a("s_mov_b32 s43, 0x20000")
    a("s_lshl_b32 s60, s55, 7")
    a("s_add_u32 s60, s60, s59")
    a("buffer_load_ushort v10, v4, s[40:43], s60 offen")
    a("s_mov_b32 s44, s14")
    a("s_mov_b32 s45, s15")
    a("s_mov_b32 s46, 8")
    a("s_mov_b32 s47, 0x20000")
    a("s_lshr_b32 s61, s52, 2")
    a("s_lshl_b32 s61, s61, 1")
    a("buffer_load_ushort v11, v5, s[44:47], s61 offen")
    a("s_lshl_b32 s62, s52, 4")
    a("s_add_u32 s62, s62, s53")
    a("s_lshl_b32 s62, s62, 12")
    for p in range(16):
        a(f"buffer_load_dword v{16+p}, v1, s[36:39], s62 offen offset:{p*256} sc1")
    a("s_waitcnt vmcnt(16)")
    a("v_lshlrev_b32 v12, 16, v8")
    a("v_and_b32 v13, 0xffff0000, v8")
    a("v_lshlrev_b32 v14, 16, v9")
    a("v_and_b32 v15, 0xffff0000, v9")
    a("v_mul_f32 v12, v12, v14")
    a("v_fmac_f32 v12, v13, v15")
    wave_allreduce(a, "v_add_f32", "v12", "v13")
    a("v_lshlrev_b32 v11, 16, v11")
    a("v_sub_f32 v11, 1.0, v11")
    a(f"v_mul_f32 v11, {f2u(-1e9*LOG2E):#x}, v11")
    a(f"s_mov_b32 s63, {f2u(C_SL):#x}")
    a("v_fma_f32 v12, v12, s63, v11")
    a("v_lshlrev_b32 v10, 16, v10")
    a("v_max_f32 v13, v6, v12")
    wave_allreduce(a, "v_max_f32", "v13", "v14")
    a("v_sub_f32 v6, v6, v13")
    a("v_sub_f32 v12, v12, v13")
    a("v_exp_f32 v6, v6")
    a("v_exp_f32 v12, v12")
    a("s_nop 0")
    a("v_mul_f32 v7, v6, v7")
    wave_allreduce(a, "v_add_f32", "v7", "v14")
    a("v_add_f32 v7, v7, v12")
    a("v_rcp_f32 v7, v7")
    a("s_nop 0")
    a("v_mul_f32 v6, v6, v7")
    a("v_mul_f32 v12, v12, v7")
    a("v_mul_f32 v12, v12, v10")
    for p in range(16):
        a(f"v_readlane_b32 s{64+p}, v6, {4*p}")
    a("s_waitcnt vmcnt(0)")
    for p in range(16):
        a(f"v_fma_f32 v12, v{16+p}, s{64+p}, v12")
    a("v_cvt_pk_bf16_f32 v12, v12, v12")
    a("s_mov_b32 s24, s16")
    a("s_mov_b32 s25, s17")
    a("s_mov_b32 s26, 32768")
    a("s_mov_b32 s27, 0x20000")
    a("s_lshl_b32 s58, s56, 8")
    a("s_lshl_b32 s60, s55, 7")
    a("s_add_u32 s58, s58, s60")
    a("buffer_store_short v12, v4, s[24:27], s58 offen")

if __name__ == "__main__":
    import argparse
    ap = argparse.ArgumentParser()
    ap.add_argument("-o", default="a_2k.s")
    ap.add_argument("--mode", default="2k")
    ap.add_argument("--kfl", default="")
    ap.add_argument("--vfl", default="")
    ap.add_argument("-W", type=int, default=8)
    x = ap.parse_args()
    open(x.o, "w").write(gen(mode=x.mode, kfl=(" " + x.kfl if x.kfl else ""), vfl=(" " + x.vfl if x.vfl else ""), W=x.W))
```

```python
import sys, math, struct
sys.path.insert(0, "gen")
from common import *

def f2u(x): return struct.unpack("<I", struct.pack("<f", x))[0]
LOG2E = 1.4426950408889634
SCALE = 128 ** -0.5
C_SL = SCALE * LOG2E

ML_BASE = 1 << 20
STAMP_BASE = 2 << 20
LDS_M = 0
LDS_O = 256
ESTR = 1088
WSTR = 4 * ESTR
LDS_SIZE = LDS_O + 4 * WSTR
SPIN = 1 << 16

def wave_allreduce(a, op, v, t):
    for ctl in ("quad_perm:[1,0,3,2]", "quad_perm:[2,3,0,1]", "row_half_mirror", "row_mirror"):
        a("s_nop 1")
        a(f"{op}_dpp {v}, {v}, {v} {ctl} row_mask:0xf bank_mask:0xf")
    cross_rows(a, op, v, t)

def cross_rows(a, op, v, t):
    a(f"v_mov_b32 {t}, {v}")
    a("s_nop 1")
    a(f"v_permlane16_swap_b32 {t}, {v}")
    a("s_nop 1")
    a(f"{op} {v}, {v}, {t}")
    a(f"v_mov_b32 {t}, {v}")
    a("s_nop 1")
    a(f"v_permlane32_swap_b32 {t}, {v}")
    a("s_nop 1")
    a(f"{op} {v}, {v}, {t}")

class VM:
    def __init__(self, a): self.a = a; self.n = 0; self.tag = {}
    def op(self, text, tag=None):
        self.a(text); self.n += 1
        if tag: self.tag[tag] = self.n
    def wait(self, tag):
        left = self.n - self.tag[tag]
        self.a(f"s_waitcnt vmcnt({min(left, 63)})")

def gen(mode="a2a", kfl="", vfl="", W=8, stamps=False, sleep=0):
    a = Asm()
    a(HEADER.rstrip("\n"))
    a(f"; @launch grid=(256,1,1) block=(256,1,1) lds={LDS_SIZE}")
    a('.amdgcn_target "amdgcn-amd-amdhsa--gfx950"')
    a(".text")
    kernel_begin(a, KNAME)
    vm = VM(a)
    def stamp(i):
        if stamps: a(f"s_memrealtime s[{80+2*i}:{81+2*i}]")
    stamp(0)
    a("s_cmp_ge_u32 s2, 256")
    a("s_cbranch_scc1 L_end")
    a("s_load_dwordx16 s[4:19], s[0:1], 0")
    a("s_load_dwordx2 s[20:21], s[0:1], 64")
    a("v_lshrrev_b32 v1, 6, v0")
    a("v_and_b32 v2, 63, v0")
    a("v_readfirstlane_b32 s3, v1")
    a("v_and_b32 v3, 15, v2")
    a("v_lshrrev_b32 v4, 4, v2")
    a("v_and_b32 v5, 3, v3")
    a("v_lshlrev_b32 v5, 10, v5")
    a("v_lshrrev_b32 v6, 2, v3")
    a("v_lshl_add_u32 v5, v6, 8, v5")
    a("v_lshl_add_u32 v5, v4, 4, v5")
    a("v_lshlrev_b32 v6, 4, v2")
    a("v_and_b32 v7, 7, v3")
    a("v_lshlrev_b32 v7, 8, v7")
    a("v_lshl_add_u32 v7, v4, 4, v7")
    a("s_lshl_b32 s22, s2, 17")
    a("s_lshr_b32 s52, s2, 4")
    a("s_and_b32 s53, s2, 15")
    a("s_lshl_b32 s23, s3, 15")
    a("s_mov_b32 s33, s23")
    a("s_lshl_b32 s54, s52, 11")
    a("v_lshrrev_b32 v1, 3, v2")
    a("v_and_b32 v58, 7, v2")
    a("v_lshlrev_b32 v58, 4, v58")
    a("v_lshl_add_u32 v1, v1, 13, v58")
    a("s_lshr_b32 s55, s3, 1")
    a("s_lshl_b32 s55, s55, 12")
    a("s_and_b32 s50, s3, 1")
    a("s_lshl_b32 s50, s50, 7")
    a("s_add_u32 s55, s55, s50")
    a("s_lshl_b32 s50, s52, 16")
    a("s_add_u32 s55, s55, s50")
    a("s_lshl_b32 s50, s53, 8")
    a("s_add_u32 s55, s55, s50")
    a("s_lshl_b32 s56, s52, 12")
    a("s_lshl_b32 s50, s53, 5")
    a("s_add_u32 s56, s56, s50")
    a("s_lshl_b32 s50, s3, 3")
    a("s_add_u32 s56, s56, s50")
    a(f"s_add_u32 s56, s56, {ML_BASE}")
    a("v_lshlrev_b32 v59, 9, v2")
    a("v_mov_b32 v60, -1")
    a("v_mov_b32 v61, -1")
    a("v_mov_b32 v62, -1")
    a("v_mov_b32 v63, -1")
    a("s_waitcnt lgkmcnt(0)")
    a("s_add_u32 s24, s6, s22")
    a("s_addc_u32 s25, s7, 0")
    a("s_mov_b32 s26, 0x20000")
    a("s_mov_b32 s27, 0x20000")
    a("s_add_u32 s40, s4, s54")
    a("s_addc_u32 s41, s5, 0")
    a("s_mov_b32 s42, 2048")
    a("s_mov_b32 s43, 0x20000")
    a("s_add_u32 s28, s8, s22")
    a("s_addc_u32 s29, s9, 0")
    a("s_mov_b32 s30, 0x20000")
    a("s_mov_b32 s31, 0x20000")
    a("s_mov_b32 s36, s20")
    a("s_mov_b32 s37, s21")
    a("s_mov_b32 s38, 0x10000000")
    a("s_mov_b32 s39, 0x20000")
    QB = 8
    for i in range(4):
        vm.op(f"buffer_load_dwordx4 v[{QB+4*i}:{QB+4*i+3}], v7, s[40:43], 0 offen offset:{i*64}")
    VB = 128
    seq = [("k", i) for i in range(32)] + [("v", i) for i in range(32)]
    issued = [0]
    def issue(n):
        for _ in range(n):
            if issued[0] >= len(seq): return
            kind, idx = seq[issued[0]]
            i = idx & 3
            if kind == "k":
                vm.op(f"buffer_load_dwordx4 a[{idx*4}:{idx*4+3}], v5, s[24:27], s23 offen offset:{i*64}{kfl}", f"k{idx}")
                if i == 3: a("s_add_u32 s23, s23, 4096")
            else:
                vm.op(f"buffer_load_dwordx4 v[{VB+idx*4}:{VB+idx*4+3}], v6, s[28:31], s33 offen offset:{i*1024}{vfl}", f"v{idx}")
                if i == 3: a("s_add_u32 s33, s33, 4096")
            issued[0] += 1
    issue(4)
    if mode == "a2a":
        vm.op("buffer_store_dwordx4 v[60:63], v1, s[36:39], s55 offen sc0 sc1")
        a("v_cmp_gt_u32 vcc, 8, v2")
        a("s_and_saveexec_b64 s[48:49], vcc")
        vm.op("buffer_store_dwordx2 v[60:61], v59, s[36:39], s56 offen sc0 sc1", "clear")
        a("s_mov_b64 exec, s[48:49]")
    issue(4 * W - 4)
    a("s_lshr_b32 s57, s53, 1")
    a("s_and_b32 s58, s53, 1")
    a("s_lshl_b32 s59, s52, 3")
    a("s_add_u32 s59, s59, s57")
    a("v_lshlrev_b32 v112, 2, v2")
    a("v_lshlrev_b32 v113, 1, v2")
    a("v_mov_b32 v114, 0")
    a("s_mov_b32 s64, s4")
    a("s_mov_b32 s65, s5")
    a("s_mov_b32 s66, 32768")
    a("s_mov_b32 s67, 0x20000")
    a("s_lshl_b32 s60, s59, 8")
    vm.op("buffer_load_dword v116, v112, s[64:67], s60 offen")
    a("s_mov_b32 s68, s10")
    a("s_mov_b32 s69, s11")
    a("s_mov_b32 s70, 4096")
    a("s_mov_b32 s71, 0x20000")
    a("s_lshl_b32 s61, s52, 8")
    vm.op("buffer_load_dword v117, v112, s[68:71], s61 offen")
    a("s_mov_b32 s72, s12")
    a("s_mov_b32 s73, s13")
    a("s_mov_b32 s74, 4096")
    a("s_mov_b32 s75, 0x20000")
    a("s_lshl_b32 s62, s58, 7")
    a("s_add_u32 s62, s62, s61")
    vm.op("buffer_load_ushort v118, v113, s[72:75], s62 offen")
    a("s_mov_b32 s76, s14")
    a("s_mov_b32 s77, s15")
    a("s_mov_b32 s78, 8")
    a("s_mov_b32 s79, 0x20000")
    a("s_lshr_b32 s63, s52, 2")
    a("s_lshl_b32 s63, s63, 1")
    vm.op("buffer_load_ushort v119, v114, s[76:79], s63 offen", "tree")
    a("s_mov_b32 s96, s18")
    a("s_mov_b32 s97, s19")
    a("s_mov_b32 s98, 256")
    a("s_mov_b32 s99, 0x20000")
    a(f"s_mov_b32 s44, {f2u(C_SL):#x}")
    a("s_mov_b32 s45, 0x05040100")
    a("s_mov_b32 s46, 0x07060302")
    SB = 24
    for t in range(8):
        vm.wait(f"k{4*t+3}")
        if t == 0: stamp(1)
        for i in range(4):
            c = "0" if i == 0 else f"v[{SB+4*t}:{SB+4*t+3}]"
            a(f"v_mfma_f32_16x16x32_bf16 v[{SB+4*t}:{SB+4*t+3}], a[{(t*4+i)*4}:{(t*4+i)*4+3}], v[{QB+4*i}:{QB+4*i+3}], {c}")
        if t == 1 and mode == "a2a":
            a("s_lshl_b32 s60, s52, 2")
            a("v_mov_b32 v115, 1")
            a("v_cmp_eq_u32 vcc, 0, v2")
            a("s_and_saveexec_b64 s[48:49], vcc")
            vm.op("buffer_atomic_add v115, v114, s[96:99], s60 offen sc1")
            a("s_mov_b64 exec, s[48:49]")
        issue(4)
    issue(64)
    stamp(2)
    vm.wait("tree")
    a("v_lshlrev_b32 v120, 16, v116")
    a("v_and_b32 v121, 0xffff0000, v116")
    a("v_lshlrev_b32 v122, 16, v117")
    a("v_and_b32 v123, 0xffff0000, v117")
    a("v_mul_f32 v120, v120, v122")
    a("v_fmac_f32 v120, v121, v123")
    wave_allreduce(a, "v_add_f32", "v120", "v121")
    a("v_lshlrev_b32 v119, 16, v119")
    a("v_sub_f32 v119, 1.0, v119")
    a(f"v_mul_f32 v119, {f2u(-1e9*LOG2E):#x}, v119")
    a("v_fma_f32 v116, v120, s44, v119")
    a("v_lshlrev_b32 v117, 16, v118")
    M = "v56"; T = "v57"
    a(f"v_max3_f32 {M}, v{SB}, v{SB+1}, v{SB+2}")
    r = 3
    while r < 32:
        if r + 1 < 32:
            a(f"v_max3_f32 {M}, {M}, v{SB+r}, v{SB+r+1}"); r += 2
        else:
            a(f"v_max_f32 {M}, {M}, v{SB+r}"); r += 1
    cross_rows(a, "v_max_f32", M, T)
    a("v_and_b32 v58, 7, v3")
    a("v_lshlrev_b32 v58, 4, v58")
    a("s_lshl_b32 s47, s3, 2")
    a("v_add_u32 v60, s47, v58")
    a("v_cmp_gt_u32 vcc, 8, v2")
    a("s_and_saveexec_b64 s[48:49], vcc")
    a(f"ds_write_b32 v60, {M} offset:{LDS_M}")
    a("s_mov_b64 exec, s[48:49]")
    a("s_waitcnt lgkmcnt(0)")
    a("s_barrier")
    a(f"ds_read_b128 v[60:63], v58 offset:{LDS_M}")
    a("s_waitcnt lgkmcnt(0)")
    a("v_max3_f32 v60, v60, v61, v62")
    a(f"v_max_f32 {M}, v60, v63")
    a(f"v_mul_f32 {M}, s44, {M}")
    a("s_nop 0")
    for r in range(32):
        a(f"v_fma_f32 v{SB+r}, v{SB+r}, s44, -{M}")
    for r in range(32):
        a(f"v_exp_f32 v{SB+r}, v{SB+r}")
    a("s_nop 0")
    L = "v57"; T2 = "v58"
    a(f"v_add_f32 v60, v{SB}, v{SB+1}")
    a(f"v_add_f32 v61, v{SB+2}, v{SB+3}")
    for r in range(4, 32, 2):
        a(f"v_add_f32 v60, v60, v{SB+r}")
        a(f"v_add_f32 v61, v61, v{SB+r+1}")
    a(f"v_add_f32 {L}, v60, v61")
    cross_rows(a, "v_add_f32", L, T2)
    PL, PH = 64, 80
    for t in range(8):
        a(f"v_cvt_pk_bf16_f32 v{PL+2*t}, v{SB+4*t}, v{SB+4*t+1}")
        a(f"v_cvt_pk_bf16_f32 v{PL+2*t+1}, v{SB+4*t+2}, v{SB+4*t+3}")
    a("v_cmp_gt_u32 vcc, 8, v3")
    a("s_nop 1")
    a("v_cndmask_b32 v60, 0, -1, vcc")
    a("v_not_b32 v61, v60")
    for r in range(16):
        a(f"v_and_b32 v{PH+r}, v61, v{PL+r}")
    for r in range(16):
        a(f"v_and_b32 v{PL+r}, v60, v{PL+r}")
    a(f"v_mov_b32 v62, {M}")
    a(f"v_mov_b32 v63, {L}")
    a("v_cmp_gt_u32 vcc, 8, v2")
    a("s_and_saveexec_b64 s[48:49], vcc")
    vm.op("buffer_store_dwordx2 v[62:63], v59, s[36:39], s56 offen sc0 sc1")
    a("s_mov_b64 exec, s[48:49]")
    stamp(3)
    a("s_mul_i32 s47, s3, %d" % WSTR)
    a("v_add_u32 v60, s47, v6")
    a("v_and_b32 v61, 3, v2")
    a(f"v_mul_u32_u24 v61, {ESTR}, v61")
    a("v_lshrrev_b32 v62, 3, v2")
    a("v_and_b32 v63, 4, v2")
    a("v_lshl_add_u32 v63, v63, 1, v62")
    a("s_lshl_b32 s47, s3, 4")
    a("v_add_u32 v63, s47, v63")
    a("v_lshl_add_u32 v61, v63, 4, v61")
    a("v_and_b32 v58, 32, v2")
    a("v_and_b32 v62, 4, v2")
    a("v_lshl_add_u32 v58, v62, 2, v58")
    a("v_and_b32 v62, 3, v2")
    a("v_lshl_add_u32 v58, v62, 2, v58")
    a("v_bfe_u32 v62, v2, 3, 2")
    a("v_add_u32 v58, v58, v62")
    a("v_lshlrev_b32 v58, 2, v58")
    a("v_lshlrev_b32 v57, 3, v2")
    a("s_lshl_b32 s60, s59, 9")
    a(f"s_add_u32 s60, s60, {ML_BASE}")
    a("s_lshl_b32 s61, s52, 4")
    a("s_add_u32 s61, s61, s53")
    a("s_lshl_b32 s61, s61, 12")
    a("s_lshl_b32 s62, s52, 2")
    a("s_lshl_b32 s63, s59, 8")
    a("s_lshl_b32 s50, s58, 7")
    a("s_add_u32 s63, s63, s50")
    a("s_mov_b32 s24, s16")
    a("s_mov_b32 s25, s17")
    a("s_mov_b32 s26, 32768")
    a("s_mov_b32 s27, 0x20000")
    AC = 96
    TP = 8
    for u in range(4):
        if u == 3 and mode == "a2a":
            vm.op("buffer_load_dword v118, v114, s[96:99], s62 offen sc1", "cnt")
            vm.wait("cnt")
        else:
            vm.wait(f"v{8*u+7}")
        if u == 3:
            stamp(4)
            if mode == "a2a":
                a("v_readfirstlane_b32 s50, v118")
                a("s_cmp_eq_u32 s50, 64")
                a("s_cbranch_scc0 L_cnt_slow")
                a("L_cnt_ok:")
                vm.op("buffer_load_dwordx2 v[122:123], v57, s[36:39], s60 offen sc1", "ml")
        first = (u == 0)
        ops = [(ep, half) for ep in range(4) for half in range(2)]
        def perms(k):
            ep, half = ops[k]
            e = ep + 4 * half
            dw, hi = e >> 1, e & 1
            sel = "s46" if hi else "s45"
            tb = TP + 4 * (k & 3)
            for qq in range(4):
                r0 = VB + (8 * u + 2 * qq) * 4 + dw
                r1 = VB + (8 * u + 2 * qq + 1) * 4 + dw
                a(f"v_perm_b32 v{tb+qq}, v{r1}, v{r0}, {sel}")
        def mfma(k):
            ep, half = ops[k]
            tb = TP + 4 * (k & 3)
            pb = (PH if half else PL) + 4 * u
            c = "0" if (first and half == 0) else f"v[{AC+4*ep}:{AC+4*ep+3}]"
            a(f"v_mfma_f32_16x16x32_bf16 v[{AC+4*ep}:{AC+4*ep+3}], v[{tb}:{tb+3}], v[{pb}:{pb+3}], {c}")
        perms(0)
        perms(1)
        for k in range(8):
            mfma(k)
            if k + 2 < 8: perms(k + 2)
    for ep in range(4):
        if ep == 3: a("s_nop 4")
        if ep == 2: a("s_nop 1")
        if ep == 0: a("s_nop 1")
        a(f"ds_write_b128 v60, v[{AC+4*ep}:{AC+4*ep+3}] offset:{LDS_O+ep*ESTR}")
    a("s_waitcnt lgkmcnt(0)")
    a("s_barrier")
    for w in range(4):
        a(f"ds_read_b128 v[{8+4*w}:{8+4*w+3}], v61 offset:{LDS_O+w*WSTR}")
    a("s_waitcnt lgkmcnt(2)")
    for r in range(4): a(f"v_add_f32 v{8+r}, v{8+r}, v{12+r}")
    a("s_waitcnt lgkmcnt(0)")
    for r in range(4): a(f"v_add_f32 v{16+r}, v{16+r}, v{20+r}")
    for r in range(4): a(f"v_add_f32 v{8+r}, v{8+r}, v{16+r}")
    vm.op("buffer_store_dwordx4 v[8:11], v1, s[36:39], s55 offen sc0 sc1", "ostore")
    stamp(5)
    if mode == "a2a":
        a("s_cmp_lg_u32 s3, 0")
        a("s_cbranch_scc1 L_fin")
        for p in range(16):
            vm.op(f"buffer_load_dword v{24+p}, v58, s[36:39], s61 offen offset:{p*256} sc1", f"o{p}")
        vm.wait("ml")
        a("s_mov_b32 s51, 0")
        a("L_ml_check:")
        a("v_cmp_eq_u32 vcc, -1, v122")
        a("v_cmp_eq_u32 s[48:49], -1, v123")
        a("s_or_b64 vcc, vcc, s[48:49]")
        a("s_cbranch_vccnz L_ml_slow")
        a("L_ml_ok:")
        weights(a, "v122", "v123", "v116", "v117")
        a("s_mov_b32 s51, 0")
        a("L_sweep:")
        a("s_waitcnt vmcnt(0)")
        a("v_fma_f32 v40, v24, s64, v120")
        for p in range(1, 16):
            a(f"v_fma_f32 v40, v{24+p}, s{64+p}, v40")
        a("v_cmp_u_f32 vcc, v40, v40")
        a("s_cbranch_vccz L_store")
        a("s_add_u32 s51, s51, 1")
        a(f"s_cmp_ge_u32 s51, {SPIN}")
        a("s_cbranch_scc1 L_store")
        if sleep: a(f"s_sleep {sleep}")
        for p in range(16):
            a(f"buffer_load_dword v{24+p}, v58, s[36:39], s61 offen offset:{p*256} sc1")
        a("s_branch L_sweep")
        a("L_store:")
        stamp(6)
        a("v_cvt_pk_bf16_f32 v40, v40, v40")
        a("buffer_store_short v40, v113, s[24:27], s63 offen")
        a("s_branch L_fin")
        a("L_cnt_slow:")
        a("s_mov_b32 s51, 0")
        a("L_cnt_loop:")
        a("buffer_load_dword v118, v114, s[96:99], s62 offen sc1")
        a("s_waitcnt vmcnt(0)")
        a("v_readfirstlane_b32 s50, v118")
        a("s_cmp_eq_u32 s50, 64")
        a("s_cbranch_scc1 L_cnt_ok")
        a("s_add_u32 s51, s51, 1")
        a(f"s_cmp_lt_u32 s51, {SPIN}")
        a("s_cbranch_scc1 L_cnt_loop")
        a("s_branch L_cnt_ok")
        a("L_ml_slow:")
        a("s_add_u32 s51, s51, 1")
        a(f"s_cmp_ge_u32 s51, {SPIN}")
        a("s_cbranch_scc1 L_ml_ok")
        a("buffer_load_dwordx2 v[122:123], v57, s[36:39], s60 offen sc1")
        a("s_waitcnt vmcnt(0)")
        a("s_branch L_ml_check")
    elif mode == "last":
        a("s_waitcnt vmcnt(0)")
        a("s_barrier")
        a("v_mov_b32 v115, 1")
        a("s_cmp_lg_u32 s3, 0")
        a("s_cbranch_scc1 L_la_wait")
        a("v_cmp_eq_u32 vcc, 0, v2")
        a("s_and_saveexec_b64 s[48:49], vcc")
        a("buffer_atomic_add v115, v114, s[96:99], s62 offen sc0 sc1")
        a("s_waitcnt vmcnt(0)")
        a("v_mov_b32 v118, 0")
        a("ds_write_b32 v118, v115 offset:0")
        a("s_waitcnt lgkmcnt(0)")
        a("s_mov_b64 exec, s[48:49]")
        a("L_la_wait:")
        a("s_barrier")
        a("ds_read_b32 v115, v114 offset:0")
        a("s_waitcnt lgkmcnt(0)")
        a("v_readfirstlane_b32 s50, v115")
        a("s_cmp_eq_u32 s50, 15")
        a("s_cbranch_scc0 L_fin")
        for hh in range(2):
            a("s_lshl_b32 s57, s3, 1")
            a(f"s_add_u32 s57, s57, {hh}")
            a("s_lshl_b32 s59, s52, 3")
            a("s_add_u32 s59, s59, s57")
            a("s_lshl_b32 s60, s59, 9")
            a(f"s_add_u32 s60, s60, {ML_BASE}")
            a("buffer_load_dwordx2 v[122:123], v57, s[36:39], s60 offen sc1")
            a("s_mov_b32 s28, s4"); a("s_mov_b32 s29, s5"); a("s_mov_b32 s30, 32768"); a("s_mov_b32 s31, 0x20000")
            a("s_lshl_b32 s61, s59, 8")
            a("buffer_load_dword v116, v112, s[28:31], s61 offen")
            a("s_mov_b32 s28, s10"); a("s_mov_b32 s29, s11"); a("s_mov_b32 s30, 4096")
            a("s_lshl_b32 s61, s52, 8")
            a("buffer_load_dword v117, v112, s[28:31], s61 offen")
            a("s_mov_b32 s28, s12"); a("s_mov_b32 s29, s13")
            a("buffer_load_ushort v118, v113, s[28:31], s61 offen")
            a("buffer_load_ushort v121, v113, s[28:31], s61 offen offset:128")
            a("s_lshl_b32 s61, s52, 4")
            a("s_lshl_b32 s50, s57, 1")
            a("s_add_u32 s61, s61, s50")
            a("s_lshl_b32 s61, s61, 12")
            for p in range(16):
                a(f"buffer_load_dword v{24+p}, v58, s[36:39], s61 offen offset:{p*256} sc1")
            a("s_add_u32 s61, s61, 4096")
            for p in range(16):
                a(f"buffer_load_dword v{40+p}, v58, s[36:39], s61 offen offset:{p*256} sc1")
            a("s_waitcnt vmcnt(32)")
            a("v_lshlrev_b32 v8, 16, v116")
            a("v_and_b32 v9, 0xffff0000, v116")
            a("v_lshlrev_b32 v10, 16, v117")
            a("v_and_b32 v11, 0xffff0000, v117")
            a("v_mul_f32 v8, v8, v10")
            a("v_fmac_f32 v8, v9, v11")
            wave_allreduce(a, "v_add_f32", "v8", "v9")
            a("v_fma_f32 v116, v8, s44, v119")
            a("v_lshlrev_b32 v117, 16, v118")
            a("v_lshlrev_b32 v121, 16, v121")
            weights(a, "v122", "v123", "v116", "v117", second="v121")
            a("s_waitcnt vmcnt(0)")
            a("v_fma_f32 v56, v24, s64, v120")
            a("v_fma_f32 v57, v40, s64, v121") if False else None
            for p in range(1, 16):
                a(f"v_fma_f32 v56, v{24+p}, s{64+p}, v56")
            a("v_fma_f32 v60, v40, s64, v121")
            for p in range(1, 16):
                a(f"v_fma_f32 v60, v{40+p}, s{64+p}, v60")
            a("v_cvt_pk_bf16_f32 v56, v56, v56")
            a("v_cvt_pk_bf16_f32 v60, v60, v60")
            a("s_lshl_b32 s63, s59, 8")
            a("s_mov_b32 s28, s16"); a("s_mov_b32 s29, s17"); a("s_mov_b32 s30, 32768")
            a("buffer_store_short v56, v113, s[28:31], s63 offen")
            a("buffer_store_short v60, v113, s[28:31], s63 offen offset:128")
    a("L_fin:")
    if stamps:
        stamp(7)
        a("s_waitcnt vmcnt(0) lgkmcnt(0)")
        a("s_memrealtime s[94:95]") if False else None
        a("s_lshl_b32 s50, s2, 2")
        a("s_add_u32 s50, s50, s3")
        a("s_lshl_b32 s50, s50, 6")
        a(f"s_add_u32 s50, s50, {STAMP_BASE}")
        for j in range(16):
            a(f"v_mov_b32 v{8+j}, s{80+j}")
        a("v_mov_b32 v1, 0")
        a("v_cmp_eq_u32 vcc, 0, v2")
        a("s_and_saveexec_b64 s[48:49], vcc")
        for j in range(4):
            a(f"buffer_store_dwordx4 v[{8+4*j}:{8+4*j+3}], v1, s[36:39], s50 offen offset:{16*j}")
    a("L_end:")
    a("s_endpgm")
    a('.section .rodata,"a"')
    a(".p2align 6")
    a(descriptor(KNAME, 384, 256))
    return a.text()

def weights(a, m, l, st2, vtree, second=None):
    a(f"v_max_f32 v8, {m}, {st2}")
    wave_allreduce(a, "v_max_f32", "v8", "v9")
    a(f"v_sub_f32 v10, {m}, v8")
    a(f"v_sub_f32 v11, {st2}, v8")
    a("v_exp_f32 v10, v10")
    a("v_exp_f32 v11, v11")
    a("s_nop 0")
    a(f"v_mul_f32 v12, v10, {l}")
    wave_allreduce(a, "v_add_f32", "v12", "v9")
    a("v_add_f32 v12, v12, v11")
    a("v_rcp_f32 v12, v12")
    a("s_nop 0")
    a("v_mul_f32 v10, v10, v12")
    a("v_mul_f32 v11, v11, v12")
    a(f"v_mul_f32 v120, v11, {vtree}")
    if second: a(f"v_mul_f32 {second}, v11, {second}")
    for p in range(16):
        a(f"v_readlane_b32 s{64+p}, v10, {4*p}")
    a("s_nop 1")

if __name__ == "__main__":
    import argparse
    ap = argparse.ArgumentParser()
    ap.add_argument("-o", default="a_a2a.s")
    ap.add_argument("--mode", default="a2a")
    ap.add_argument("--kfl", default="")
    ap.add_argument("--vfl", default="")
    ap.add_argument("-W", type=int, default=8)
    ap.add_argument("--stamps", action="store_true")
    ap.add_argument("--sleep", type=int, default=0)
    x = ap.parse_args()
    open(x.o, "w").write(gen(mode=x.mode, kfl=(" " + x.kfl if x.kfl else ""), vfl=(" " + x.vfl if x.vfl else ""), W=x.W, stamps=x.stamps, sleep=x.sleep))
```

```python
import sys, math, struct
sys.path.insert(0, "gen")
from common import *

def f2u(x): return struct.unpack("<I", struct.pack("<f", x))[0]
LOG2E = 1.4426950408889634
SCALE = 128 ** -0.5
C_SL = SCALE * LOG2E

ML_BASE = 1 << 20
STAMP_BASE = 2 << 20
LDS_M = 0
LDS_O = 256
ESTR = 1088
WSTR = 4 * ESTR
LDS_SIZE = LDS_O + 4 * WSTR
SPIN = 1 << 16

def wave_allreduce(a, op, v, t):
    for ctl in ("quad_perm:[1,0,3,2]", "quad_perm:[2,3,0,1]", "row_half_mirror", "row_mirror"):
        a("s_nop 1")
        a(f"{op}_dpp {v}, {v}, {v} {ctl} row_mask:0xf bank_mask:0xf")
    cross_rows(a, op, v, t)

def cross_rows(a, op, v, t):
    a(f"v_mov_b32 {t}, {v}")
    a("s_nop 1")
    a(f"v_permlane16_swap_b32 {t}, {v}")
    a("s_nop 1")
    a(f"{op} {v}, {v}, {t}")
    a(f"v_mov_b32 {t}, {v}")
    a("s_nop 1")
    a(f"v_permlane32_swap_b32 {t}, {v}")
    a("s_nop 1")
    a(f"{op} {v}, {v}, {t}")

class VM:
    def __init__(self, a): self.a = a; self.n = 0; self.tag = {}
    def op(self, text, tag=None):
        self.a(text); self.n += 1
        if tag: self.tag[tag] = self.n
    def wait(self, tag):
        left = self.n - self.tag[tag]
        self.a(f"s_waitcnt vmcnt({min(left, 63)})")

def gen(mode="a2a", kfl="", vfl="", W=8, stamps=False, sleep=0, dbgtime=False):
    a = Asm()
    a(HEADER.rstrip("\n"))
    a(f"; @launch grid=(256,1,1) block=(256,1,1) lds={LDS_SIZE}")
    a('.amdgcn_target "amdgcn-amd-amdhsa--gfx950"')
    a(".text")
    kernel_begin(a, KNAME)
    vm = VM(a)
    def stamp(i):
        if stamps or (dbgtime and i in (0, 2, 4, 5, 7)): a(f"s_memrealtime s[{80+2*i}:{81+2*i}]")
    stamp(0)
    a("s_cmp_ge_u32 s2, 256")
    a("s_cbranch_scc1 L_end")
    a("s_load_dwordx16 s[4:19], s[0:1], 0")
    a("s_load_dwordx2 s[20:21], s[0:1], 64")
    a("v_lshrrev_b32 v1, 6, v0")
    a("v_and_b32 v2, 63, v0")
    a("v_readfirstlane_b32 s3, v1")
    a("v_and_b32 v3, 15, v2")
    a("v_lshrrev_b32 v4, 4, v2")
    a("v_and_b32 v5, 3, v3")
    a("v_lshlrev_b32 v5, 10, v5")
    a("v_lshrrev_b32 v6, 2, v3")
    a("v_lshl_add_u32 v5, v6, 8, v5")
    a("v_lshl_add_u32 v5, v4, 4, v5")
    a("v_lshlrev_b32 v6, 4, v2")
    a("v_and_b32 v7, 7, v3")
    a("v_lshlrev_b32 v7, 8, v7")
    a("v_lshl_add_u32 v7, v4, 4, v7")
    a("s_lshl_b32 s22, s2, 17")
    a("s_lshr_b32 s52, s2, 4")
    a("s_and_b32 s53, s2, 15")
    a("s_lshl_b32 s23, s3, 15")
    a("s_mov_b32 s33, s23")
    a("s_lshl_b32 s54, s52, 11")
    a("v_lshrrev_b32 v1, 3, v2")
    a("v_and_b32 v58, 7, v2")
    a("v_lshlrev_b32 v58, 4, v58")
    a("v_lshl_add_u32 v1, v1, 13, v58")
    a("s_lshr_b32 s55, s3, 1")
    a("s_lshl_b32 s55, s55, 12")
    a("s_and_b32 s50, s3, 1")
    a("s_lshl_b32 s50, s50, 7")
    a("s_add_u32 s55, s55, s50")
    a("s_lshl_b32 s50, s52, 16")
    a("s_add_u32 s55, s55, s50")
    a("s_lshl_b32 s50, s53, 8")
    a("s_add_u32 s55, s55, s50")
    a("s_lshl_b32 s56, s52, 12")
    a("s_lshl_b32 s50, s53, 5")
    a("s_add_u32 s56, s56, s50")
    a("s_lshl_b32 s50, s3, 3")
    a("s_add_u32 s56, s56, s50")
    a(f"s_add_u32 s56, s56, {ML_BASE}")
    a("v_lshlrev_b32 v59, 9, v2")
    a("v_mov_b32 v60, -1")
    a("v_mov_b32 v61, -1")
    a("v_mov_b32 v62, -1")
    a("v_mov_b32 v63, -1")
    a("s_waitcnt lgkmcnt(0)")
    a("s_add_u32 s24, s6, s22")
    a("s_addc_u32 s25, s7, 0")
    a("s_mov_b32 s26, 0x20000")
    a("s_mov_b32 s27, 0x20000")
    a("s_add_u32 s40, s4, s54")
    a("s_addc_u32 s41, s5, 0")
    a("s_mov_b32 s42, 2048")
    a("s_mov_b32 s43, 0x20000")
    a("s_add_u32 s28, s8, s22")
    a("s_addc_u32 s29, s9, 0")
    a("s_mov_b32 s30, 0x20000")
    a("s_mov_b32 s31, 0x20000")
    a("s_mov_b32 s36, s20")
    a("s_mov_b32 s37, s21")
    a("s_mov_b32 s38, 0x10000000")
    a("s_mov_b32 s39, 0x20000")
    QB = 8
    for i in range(4):
        vm.op(f"buffer_load_dwordx4 v[{QB+4*i}:{QB+4*i+3}], v7, s[40:43], 0 offen offset:{i*64}")
    VB = 128
    seq = [("k", i) for i in range(32)] + [("v", i) for i in range(32)]
    issued = [0]
    def issue(n):
        for _ in range(n):
            if issued[0] >= len(seq): return
            kind, idx = seq[issued[0]]
            i = idx & 3
            if kind == "k":
                vm.op(f"buffer_load_dwordx4 a[{idx*4}:{idx*4+3}], v5, s[24:27], s23 offen offset:{i*64}{kfl}", f"k{idx}")
                if i == 3: a("s_add_u32 s23, s23, 4096")
            else:
                vm.op(f"buffer_load_dwordx4 v[{VB+idx*4}:{VB+idx*4+3}], v6, s[28:31], s33 offen offset:{i*1024}{vfl}", f"v{idx}")
                if i == 3: a("s_add_u32 s33, s33, 4096")
            issued[0] += 1
    issue(4)
    if mode == "a2a":
        vm.op("buffer_store_dwordx4 v[60:63], v1, s[36:39], s55 offen sc0 sc1")
        a("v_cmp_gt_u32 vcc, 8, v2")
        a("s_and_saveexec_b64 s[48:49], vcc")
        vm.op("buffer_store_dwordx2 v[60:61], v59, s[36:39], s56 offen sc0 sc1", "clear")
        a("s_mov_b64 exec, s[48:49]")
    issue(4 * W - 4)
    a("s_lshr_b32 s57, s53, 1")
    a("s_and_b32 s58, s53, 1")
    a("s_lshl_b32 s59, s52, 3")
    a("s_add_u32 s59, s59, s57")
    a("v_lshlrev_b32 v112, 2, v2")
    a("v_lshlrev_b32 v113, 1, v2")
    a("v_mov_b32 v114, 0")
    a("s_mov_b32 s64, s4")
    a("s_mov_b32 s65, s5")
    a("s_mov_b32 s66, 32768")
    a("s_mov_b32 s67, 0x20000")
    a("s_lshl_b32 s60, s59, 8")
    vm.op("buffer_load_dword v116, v112, s[64:67], s60 offen")
    a("s_mov_b32 s68, s10")
    a("s_mov_b32 s69, s11")
    a("s_mov_b32 s70, 4096")
    a("s_mov_b32 s71, 0x20000")
    a("s_lshl_b32 s61, s52, 8")
    vm.op("buffer_load_dword v117, v112, s[68:71], s61 offen")
    a("s_mov_b32 s72, s12")
    a("s_mov_b32 s73, s13")
    a("s_mov_b32 s74, 4096")
    a("s_mov_b32 s75, 0x20000")
    a("s_lshl_b32 s62, s58, 7")
    a("s_add_u32 s62, s62, s61")
    vm.op("buffer_load_ushort v118, v113, s[72:75], s62 offen")
    a("s_mov_b32 s76, s14")
    a("s_mov_b32 s77, s15")
    a("s_mov_b32 s78, 8")
    a("s_mov_b32 s79, 0x20000")
    a("s_lshr_b32 s63, s52, 2")
    a("s_lshl_b32 s63, s63, 1")
    vm.op("buffer_load_ushort v119, v114, s[76:79], s63 offen", "tree")
    a("s_mov_b32 s96, s18")
    a("s_mov_b32 s97, s19")
    a("s_mov_b32 s98, 256")
    a("s_mov_b32 s99, 0x20000")
    a(f"s_mov_b32 s44, {f2u(C_SL):#x}")
    a("s_mov_b32 s45, 0x05040100")
    a("s_mov_b32 s46, 0x07060302")
    SB = 24
    for t in range(8):
        vm.wait(f"k{4*t+3}")
        if t == 0: stamp(1)
        for i in range(4):
            c = "0" if i == 0 else f"v[{SB+4*t}:{SB+4*t+3}]"
            a(f"v_mfma_f32_16x16x32_bf16 v[{SB+4*t}:{SB+4*t+3}], a[{(t*4+i)*4}:{(t*4+i)*4+3}], v[{QB+4*i}:{QB+4*i+3}], {c}")
        if t == 1 and mode == "a2a":
            a("s_lshl_b32 s60, s52, 2")
            if dbgtime: a("s_add_u32 s60, s60, 64")
            a("v_mov_b32 v115, 1")
            a("v_cmp_eq_u32 vcc, 0, v2")
            a("s_and_saveexec_b64 s[48:49], vcc")
            vm.op("buffer_atomic_add v115, v114, s[96:99], s60 offen sc1")
            a("s_mov_b64 exec, s[48:49]")
        issue(4)
    issue(64)
    stamp(2)
    vm.wait("tree")
    a("v_lshlrev_b32 v120, 16, v116")
    a("v_and_b32 v121, 0xffff0000, v116")
    a("v_lshlrev_b32 v122, 16, v117")
    a("v_and_b32 v123, 0xffff0000, v117")
    a("v_mul_f32 v120, v120, v122")
    a("v_fmac_f32 v120, v121, v123")
    wave_allreduce(a, "v_add_f32", "v120", "v121")
    a("v_lshlrev_b32 v119, 16, v119")
    a("v_sub_f32 v119, 1.0, v119")
    a(f"v_mul_f32 v119, {f2u(-1e9*LOG2E):#x}, v119")
    a("v_fma_f32 v116, v120, s44, v119")
    a("v_lshlrev_b32 v117, 16, v118")
    M = "v56"; T = "v57"
    a(f"v_max3_f32 {M}, v{SB}, v{SB+1}, v{SB+2}")
    r = 3
    while r < 32:
        if r + 1 < 32:
            a(f"v_max3_f32 {M}, {M}, v{SB+r}, v{SB+r+1}"); r += 2
        else:
            a(f"v_max_f32 {M}, {M}, v{SB+r}"); r += 1
    cross_rows(a, "v_max_f32", M, T)
    a("v_and_b32 v58, 7, v3")
    a("v_lshlrev_b32 v58, 4, v58")
    a("s_lshl_b32 s47, s3, 2")
    a("v_add_u32 v60, s47, v58")
    a("v_cmp_gt_u32 vcc, 8, v2")
    a("s_and_saveexec_b64 s[48:49], vcc")
    a(f"ds_write_b32 v60, {M} offset:{LDS_M}")
    a("s_mov_b64 exec, s[48:49]")
    a("s_waitcnt lgkmcnt(0)")
    a("s_barrier")
    a(f"ds_read_b128 v[60:63], v58 offset:{LDS_M}")
    a("s_waitcnt lgkmcnt(0)")
    a("v_max3_f32 v60, v60, v61, v62")
    a(f"v_max_f32 {M}, v60, v63")
    a(f"v_mul_f32 {M}, s44, {M}")
    a("s_nop 0")
    for r in range(32):
        a(f"v_fma_f32 v{SB+r}, v{SB+r}, s44, -{M}")
    for r in range(32):
        a(f"v_exp_f32 v{SB+r}, v{SB+r}")
    a("s_nop 0")
    L = "v57"; T2 = "v58"
    a(f"v_add_f32 v60, v{SB}, v{SB+1}")
    a(f"v_add_f32 v61, v{SB+2}, v{SB+3}")
    for r in range(4, 32, 2):
        a(f"v_add_f32 v60, v60, v{SB+r}")
        a(f"v_add_f32 v61, v61, v{SB+r+1}")
    a(f"v_add_f32 {L}, v60, v61")
    cross_rows(a, "v_add_f32", L, T2)
    PL, PH = 64, 80
    for t in range(8):
        a(f"v_cvt_pk_bf16_f32 v{PL+2*t}, v{SB+4*t}, v{SB+4*t+1}")
        a(f"v_cvt_pk_bf16_f32 v{PL+2*t+1}, v{SB+4*t+2}, v{SB+4*t+3}")
    a("v_cmp_gt_u32 vcc, 8, v3")
    a("s_nop 1")
    a("v_cndmask_b32 v60, 0, -1, vcc")
    a("v_not_b32 v61, v60")
    for r in range(16):
        a(f"v_and_b32 v{PH+r}, v61, v{PL+r}")
    for r in range(16):
        a(f"v_and_b32 v{PL+r}, v60, v{PL+r}")
    a(f"v_mov_b32 v62, {M}")
    a(f"v_mov_b32 v63, {L}")
    a("v_cmp_gt_u32 vcc, 8, v2")
    a("s_and_saveexec_b64 s[48:49], vcc")
    vm.op("buffer_store_dwordx2 v[62:63], v59, s[36:39], s56 offen sc0 sc1")
    a("s_mov_b64 exec, s[48:49]")
    stamp(3)
    a("s_mul_i32 s47, s3, %d" % WSTR)
    a("v_add_u32 v60, s47, v6")
    a("v_and_b32 v61, 3, v2")
    a(f"v_mul_u32_u24 v61, {ESTR}, v61")
    a("v_lshrrev_b32 v62, 3, v2")
    a("v_and_b32 v63, 4, v2")
    a("v_lshl_add_u32 v63, v63, 1, v62")
    a("s_lshl_b32 s47, s3, 4")
    a("v_add_u32 v63, s47, v63")
    a("v_lshl_add_u32 v61, v63, 4, v61")
    a("v_and_b32 v58, 32, v2")
    a("v_and_b32 v62, 4, v2")
    a("v_lshl_add_u32 v58, v62, 2, v58")
    a("v_and_b32 v62, 3, v2")
    a("v_lshl_add_u32 v58, v62, 2, v58")
    a("v_bfe_u32 v62, v2, 3, 2")
    a("v_add_u32 v58, v58, v62")
    a("v_lshlrev_b32 v58, 2, v58")
    a("v_lshlrev_b32 v57, 3, v2")
    a("s_lshl_b32 s60, s59, 9")
    a(f"s_add_u32 s60, s60, {ML_BASE}")
    a("s_lshl_b32 s61, s52, 4")
    a("s_add_u32 s61, s61, s53")
    a("s_lshl_b32 s61, s61, 12")
    a("s_lshl_b32 s62, s52, 2")
    if dbgtime: a("s_add_u32 s62, s62, 64")
    a("s_lshl_b32 s63, s59, 8")
    a("s_lshl_b32 s50, s58, 7")
    a("s_add_u32 s63, s63, s50")
    a("s_mov_b32 s24, s16")
    a("s_mov_b32 s25, s17")
    a("s_mov_b32 s26, 32768")
    a("s_mov_b32 s27, 0x20000")
    AC = 96
    TP = 8
    for u in range(4):
        if u == 3 and mode == "a2a":
            vm.op("buffer_load_dword v118, v114, s[96:99], s62 offen sc1", "cnt")
            vm.wait("cnt")
        else:
            vm.wait(f"v{8*u+7}")
        if u == 3:
            stamp(4)
            if mode == "a2a":
                a("v_readfirstlane_b32 s50, v118")
                a("s_cmp_ge_u32 s50, 64")
                a("s_cbranch_scc0 L_cnt_slow")
                a("L_cnt_ok:")
                vm.op("buffer_load_dwordx2 v[122:123], v57, s[36:39], s60 offen sc1", "ml")
        first = (u == 0)
        ops = [(ep, half) for ep in range(4) for half in range(2)]
        def perms(k):
            ep, half = ops[k]
            e = ep + 4 * half
            dw, hi = e >> 1, e & 1
            sel = "s46" if hi else "s45"
            tb = TP + 4 * (k & 3)
            for qq in range(4):
                r0 = VB + (8 * u + 2 * qq) * 4 + dw
                r1 = VB + (8 * u + 2 * qq + 1) * 4 + dw
                a(f"v_perm_b32 v{tb+qq}, v{r1}, v{r0}, {sel}")
        def mfma(k):
            ep, half = ops[k]
            tb = TP + 4 * (k & 3)
            pb = (PH if half else PL) + 4 * u
            c = "0" if (first and half == 0) else f"v[{AC+4*ep}:{AC+4*ep+3}]"
            a(f"v_mfma_f32_16x16x32_bf16 v[{AC+4*ep}:{AC+4*ep+3}], v[{tb}:{tb+3}], v[{pb}:{pb+3}], {c}")
        perms(0)
        perms(1)
        for k in range(8):
            mfma(k)
            if k + 2 < 8: perms(k + 2)
    for ep in range(4):
        if ep == 3: a("s_nop 4")
        if ep == 2: a("s_nop 1")
        if ep == 0: a("s_nop 1")
        a(f"ds_write_b128 v60, v[{AC+4*ep}:{AC+4*ep+3}] offset:{LDS_O+ep*ESTR}")
    a("s_waitcnt lgkmcnt(0)")
    a("s_barrier")
    for w in range(4):
        a(f"ds_read_b128 v[{8+4*w}:{8+4*w+3}], v61 offset:{LDS_O+w*WSTR}")
    a("s_waitcnt lgkmcnt(2)")
    for r in range(4): a(f"v_add_f32 v{8+r}, v{8+r}, v{12+r}")
    a("s_waitcnt lgkmcnt(0)")
    for r in range(4): a(f"v_add_f32 v{16+r}, v{16+r}, v{20+r}")
    for r in range(4): a(f"v_add_f32 v{8+r}, v{8+r}, v{16+r}")
    vm.op("buffer_store_dwordx4 v[8:11], v1, s[36:39], s55 offen sc0 sc1", "ostore")
    stamp(5)
    if mode == "a2a":
        a("s_cmp_lg_u32 s3, 0")
        a("s_cbranch_scc1 L_fin")
        for p in range(16):
            vm.op(f"buffer_load_dword v{24+p}, v58, s[36:39], s61 offen offset:{p*256} sc1", f"o{p}")
        vm.wait("ml")
        a("s_mov_b32 s51, 0")
        a("L_ml_check:")
        a("v_cmp_eq_u32 vcc, -1, v122")
        a("v_cmp_eq_u32 s[48:49], -1, v123")
        a("s_or_b64 vcc, vcc, s[48:49]")
        a("s_cbranch_vccnz L_ml_slow")
        a("L_ml_ok:")
        weights(a, "v122", "v123", "v116", "v117")
        a("s_mov_b32 s51, 0")
        a("L_sweep:")
        a("s_waitcnt vmcnt(0)")
        a("v_fma_f32 v40, v24, s64, v120")
        for p in range(1, 16):
            a(f"v_fma_f32 v40, v{24+p}, s{64+p}, v40")
        a("v_cmp_u_f32 vcc, v40, v40")
        a("s_cbranch_vccz L_store")
        a("s_add_u32 s51, s51, 1")
        a(f"s_cmp_ge_u32 s51, {SPIN}")
        a("s_cbranch_scc1 L_store")
        if sleep: a(f"s_sleep {sleep}")
        for p in range(16):
            a(f"buffer_load_dword v{24+p}, v58, s[36:39], s61 offen offset:{p*256} sc1")
        a("s_branch L_sweep")
        a("L_store:")
        stamp(6)
        a("v_cvt_pk_bf16_f32 v40, v40, v40")
        a("buffer_store_short v40, v113, s[24:27], s63 offen")
        a("s_branch L_fin")
        a("L_cnt_slow:")
        a("s_mov_b32 s51, 0")
        a("L_cnt_loop:")
        a("buffer_load_dword v118, v114, s[96:99], s62 offen sc1")
        a("s_waitcnt vmcnt(0)")
        a("v_readfirstlane_b32 s50, v118")
        a("s_cmp_ge_u32 s50, 64")
        a("s_cbranch_scc1 L_cnt_ok")
        a("s_add_u32 s51, s51, 1")
        a(f"s_cmp_lt_u32 s51, {SPIN}")
        a("s_cbranch_scc1 L_cnt_loop")
        a("s_branch L_cnt_ok")
        a("L_ml_slow:")
        a("s_add_u32 s51, s51, 1")
        a(f"s_cmp_ge_u32 s51, {SPIN}")
        a("s_cbranch_scc1 L_ml_ok")
        a("buffer_load_dwordx2 v[122:123], v57, s[36:39], s60 offen sc1")
        a("s_waitcnt vmcnt(0)")
        a("s_branch L_ml_check")
    elif mode == "last":
        a("s_waitcnt vmcnt(0)")
        a("s_barrier")
        a("v_mov_b32 v115, 1")
        a("s_cmp_lg_u32 s3, 0")
        a("s_cbranch_scc1 L_la_wait")
        a("v_cmp_eq_u32 vcc, 0, v2")
        a("s_and_saveexec_b64 s[48:49], vcc")
        a("buffer_atomic_add v115, v114, s[96:99], s62 offen sc0 sc1")
        a("s_waitcnt vmcnt(0)")
        a("v_mov_b32 v118, 0")
        a("ds_write_b32 v118, v115 offset:0")
        a("s_waitcnt lgkmcnt(0)")
        a("s_mov_b64 exec, s[48:49]")
        a("L_la_wait:")
        a("s_barrier")
        a("ds_read_b32 v115, v114 offset:0")
        a("s_waitcnt lgkmcnt(0)")
        a("v_readfirstlane_b32 s50, v115")
        a("s_cmp_eq_u32 s50, 15")
        a("s_cbranch_scc0 L_fin")
        for hh in range(2):
            a("s_lshl_b32 s57, s3, 1")
            a(f"s_add_u32 s57, s57, {hh}")
            a("s_lshl_b32 s59, s52, 3")
            a("s_add_u32 s59, s59, s57")
            a("s_lshl_b32 s60, s59, 9")
            a(f"s_add_u32 s60, s60, {ML_BASE}")
            a("buffer_load_dwordx2 v[122:123], v57, s[36:39], s60 offen sc1")
            a("s_mov_b32 s28, s4"); a("s_mov_b32 s29, s5"); a("s_mov_b32 s30, 32768"); a("s_mov_b32 s31, 0x20000")
            a("s_lshl_b32 s61, s59, 8")
            a("buffer_load_dword v116, v112, s[28:31], s61 offen")
            a("s_mov_b32 s28, s10"); a("s_mov_b32 s29, s11"); a("s_mov_b32 s30, 4096")
            a("s_lshl_b32 s61, s52, 8")
            a("buffer_load_dword v117, v112, s[28:31], s61 offen")
            a("s_mov_b32 s28, s12"); a("s_mov_b32 s29, s13")
            a("buffer_load_ushort v118, v113, s[28:31], s61 offen")
            a("buffer_load_ushort v121, v113, s[28:31], s61 offen offset:128")
            a("s_lshl_b32 s61, s52, 4")
            a("s_lshl_b32 s50, s57, 1")
            a("s_add_u32 s61, s61, s50")
            a("s_lshl_b32 s61, s61, 12")
            for p in range(16):
                a(f"buffer_load_dword v{24+p}, v58, s[36:39], s61 offen offset:{p*256} sc1")
            a("s_add_u32 s61, s61, 4096")
            for p in range(16):
                a(f"buffer_load_dword v{40+p}, v58, s[36:39], s61 offen offset:{p*256} sc1")
            a("s_waitcnt vmcnt(32)")
            a("v_lshlrev_b32 v8, 16, v116")
            a("v_and_b32 v9, 0xffff0000, v116")
            a("v_lshlrev_b32 v10, 16, v117")
            a("v_and_b32 v11, 0xffff0000, v117")
            a("v_mul_f32 v8, v8, v10")
            a("v_fmac_f32 v8, v9, v11")
            wave_allreduce(a, "v_add_f32", "v8", "v9")
            a("v_fma_f32 v116, v8, s44, v119")
            a("v_lshlrev_b32 v117, 16, v118")
            a("v_lshlrev_b32 v121, 16, v121")
            weights(a, "v122", "v123", "v116", "v117", second="v121")
            a("s_waitcnt vmcnt(0)")
            a("v_fma_f32 v56, v24, s64, v120")
            a("v_fma_f32 v57, v40, s64, v121") if False else None
            for p in range(1, 16):
                a(f"v_fma_f32 v56, v{24+p}, s{64+p}, v56")
            a("v_fma_f32 v60, v40, s64, v121")
            for p in range(1, 16):
                a(f"v_fma_f32 v60, v{40+p}, s{64+p}, v60")
            a("v_cvt_pk_bf16_f32 v56, v56, v56")
            a("v_cvt_pk_bf16_f32 v60, v60, v60")
            a("s_lshl_b32 s63, s59, 8")
            a("s_mov_b32 s28, s16"); a("s_mov_b32 s29, s17"); a("s_mov_b32 s30, 32768")
            a("buffer_store_short v56, v113, s[28:31], s63 offen")
            a("buffer_store_short v60, v113, s[28:31], s63 offen offset:128")
    a("L_fin:")
    if stamps:
        stamp(7)
        a("s_waitcnt vmcnt(0) lgkmcnt(0)")
        a("s_memrealtime s[94:95]") if False else None
        a("s_lshl_b32 s50, s2, 2")
        a("s_add_u32 s50, s50, s3")
        a("s_lshl_b32 s50, s50, 6")
        a(f"s_add_u32 s50, s50, {STAMP_BASE}")
        for j in range(16):
            a(f"v_mov_b32 v{8+j}, s{80+j}")
        a("v_mov_b32 v1, 0")
        a("v_cmp_eq_u32 vcc, 0, v2")
        a("s_and_saveexec_b64 s[48:49], vcc")
        for j in range(4):
            a(f"buffer_store_dwordx4 v[{8+4*j}:{8+4*j+3}], v1, s[36:39], s50 offen offset:{16*j}")
    if dbgtime:
        stamp(7)
        a("s_waitcnt vmcnt(0) lgkmcnt(0)")
        a("s_not_b32 s50, s80")
        a("v_mov_b32 v8, s50")
        a("v_mov_b32 v9, s84")
        a("v_mov_b32 v10, s88")
        a("v_mov_b32 v11, s90")
        a("v_mov_b32 v12, s94")
        a("v_mov_b32 v13, s80")
        a("v_mov_b32 v1, 0")
        a("v_cmp_eq_u32 vcc, 0, v2")
        a("s_and_saveexec_b64 s[48:49], vcc")
        for j in range(6):
            a(f"buffer_atomic_umax v{8+j}, v1, s[96:99], 0 offen offset:{4*j}")
    a("L_end:")
    a("s_endpgm")
    a('.section .rodata,"a"')
    a(".p2align 6")
    a(descriptor(KNAME, 384, 256))
    return a.text()

def weights(a, m, l, st2, vtree, second=None):
    a(f"v_max_f32 v8, {m}, {st2}")
    wave_allreduce(a, "v_max_f32", "v8", "v9")
    a(f"v_sub_f32 v10, {m}, v8")
    a(f"v_sub_f32 v11, {st2}, v8")
    a("v_exp_f32 v10, v10")
    a("v_exp_f32 v11, v11")
    a("s_nop 0")
    a(f"v_mul_f32 v12, v10, {l}")
    wave_allreduce(a, "v_add_f32", "v12", "v9")
    a("v_add_f32 v12, v12, v11")
    a("v_rcp_f32 v12, v12")
    a("s_nop 0")
    a("v_mul_f32 v10, v10, v12")
    a("v_mul_f32 v11, v11, v12")
    a(f"v_mul_f32 v120, v11, {vtree}")
    if second: a(f"v_mul_f32 {second}, v11, {second}")
    for p in range(16):
        a(f"v_readlane_b32 s{64+p}, v10, {4*p}")
    a("s_nop 1")

if __name__ == "__main__":
    import argparse
    ap = argparse.ArgumentParser()
    ap.add_argument("-o", default="a_a2a.s")
    ap.add_argument("--mode", default="a2a")
    ap.add_argument("--kfl", default="")
    ap.add_argument("--vfl", default="")
    ap.add_argument("-W", type=int, default=8)
    ap.add_argument("--stamps", action="store_true")
    ap.add_argument("--sleep", type=int, default=0)
    ap.add_argument("--dbgtime", action="store_true")
    x = ap.parse_args()
    open(x.o, "w").write(gen(mode=x.mode, kfl=(" " + x.kfl if x.kfl else ""), vfl=(" " + x.vfl if x.vfl else ""), W=x.W, stamps=x.stamps, sleep=x.sleep, dbgtime=x.dbgtime))
```

```python
import sys, math, struct
sys.path.insert(0, "gen")
from common import *

def f2u(x): return struct.unpack("<I", struct.pack("<f", x))[0]
LOG2E = 1.4426950408889634
SCALE = 128 ** -0.5
C_SL = SCALE * LOG2E

O_BASE = 0
ML_BASE = 2 << 20
STAMP_BASE = 4 << 20
LDS_M = 0
LDS_N = 128
LDS_O = 256
ESTR = 1088
WSTR = 4 * ESTR
LDS_SIZE = LDS_O + 4 * WSTR
SPIN = 1 << 16

def wave_allreduce(a, op, v, t):
    for ctl in ("quad_perm:[1,0,3,2]", "quad_perm:[2,3,0,1]", "row_half_mirror", "row_mirror"):
        a("s_nop 1")
        a(f"{op}_dpp {v}, {v}, {v} {ctl} row_mask:0xf bank_mask:0xf")
    cross_rows(a, op, v, t)

def cross_rows(a, op, v, t):
    a(f"v_mov_b32 {t}, {v}")
    a("s_nop 1")
    a(f"v_permlane16_swap_b32 {t}, {v}")
    a("s_nop 1")
    a(f"{op} {v}, {v}, {t}")
    a(f"v_mov_b32 {t}, {v}")
    a("s_nop 1")
    a(f"v_permlane32_swap_b32 {t}, {v}")
    a("s_nop 1")
    a(f"{op} {v}, {v}, {t}")

class VM:
    def __init__(self, a): self.a = a; self.n = 0; self.tag = {}
    def op(self, text, tag=None):
        self.a(text); self.n += 1
        if tag: self.tag[tag] = self.n
    def wait(self, tag):
        left = self.n - self.tag[tag]
        assert left <= 63, left
        self.a(f"s_waitcnt vmcnt({left})")

def srd(a, base, lo, hi, size):
    a(f"s_mov_b32 s{base}, s{lo}")
    a(f"s_mov_b32 s{base+1}, s{hi}")
    a(f"s_mov_b32 s{base+2}, {size}")
    a(f"s_mov_b32 s{base+3}, 0x20000")

def tree_loads(a, lane):
    a(f"v_lshlrev_b32 v112, 2, {lane}")
    a("v_mov_b32 v113, 0")
    a(f"v_and_b32 v114, 31, {lane}")
    a("v_and_b32 v115, 0x1b, v114")
    a(f"v_and_b32 v124, 3, {lane}")
    a(f"v_and_b32 v115, 4, {lane}")
    a("v_add_u32 v124, v124, v115")
    a(f"v_and_b32 v115, 8, {lane}")
    a("v_lshl_add_u32 v124, v115, 1, v124")
    a(f"v_and_b32 v115, 16, {lane}")
    a("v_lshl_add_u32 v124, v115, 1, v124")
    a(f"v_lshrrev_b32 v115, 5, {lane}")
    a("v_lshl_add_u32 v124, v115, 3, v124")
    a("v_lshlrev_b32 v124, 1, v124")
    srd(a, 64, 4, 5, 32768)
    a("s_lshl_b32 s60, s59, 8")
    a("buffer_load_dword v116, v112, s[64:67], s60 offen")
    srd(a, 68, 10, 11, 4096)
    a("s_lshl_b32 s61, s52, 8")
    a("buffer_load_dword v117, v112, s[68:71], s61 offen")
    srd(a, 72, 12, 13, 4096)
    a("s_lshl_b32 s62, s58, 7")
    a("s_add_u32 s62, s62, s61")
    a("buffer_load_ushort v118, v124, s[72:75], s62 offen")
    srd(a, 76, 14, 15, 8)
    a("s_lshr_b32 s63, s52, 2")
    a("s_lshl_b32 s63, s63, 1")
    a("buffer_load_ushort v119, v113, s[76:79], s63 offen")

def tree_score(a):
    a("v_lshlrev_b32 v120, 16, v116")
    a("v_and_b32 v121, 0xffff0000, v116")
    a("v_lshlrev_b32 v126, 16, v117")
    a("v_and_b32 v127, 0xffff0000, v117")
    a("v_mul_f32 v120, v120, v126")
    a("v_fmac_f32 v120, v121, v127")
    wave_allreduce(a, "v_add_f32", "v120", "v121")
    a("v_lshlrev_b32 v119, 16, v119")
    a("v_sub_f32 v119, 1.0, v119")
    a(f"v_mul_f32 v119, {f2u(-1e9*LOG2E):#x}, v119")
    a("v_fma_f32 v120, v120, s44, v119")
    a("v_lshlrev_b32 v121, 16, v118")

def weights(a, lane):
    a("v_max_f32 v8, v60, v120")
    wave_allreduce(a, "v_max_f32", "v8", "v9")
    a("v_sub_f32 v10, v60, v8")
    a("v_sub_f32 v11, v120, v8")
    a("v_exp_f32 v10, v10")
    a("v_exp_f32 v11, v11")
    a(f"v_lshrrev_b32 v13, 5, {lane}")
    a("v_mul_f32 v12, v10, v61")
    a("v_lshlrev_b32 v13, 4, v13")
    wave_allreduce(a, "v_add_f32", "v12", "v9")
    a("v_add_f32 v12, v12, v11")
    a("v_rcp_f32 v12, v12")
    a("s_nop 0")
    a("v_mul_f32 v10, v10, v12")
    a("v_mul_f32 v11, v11, v12")
    a("v_mul_f32 v121, v11, v121")
    for i in range(8):
        a(f"ds_bpermute_b32 v{80+i}, v13, v10 offset:{32*i}")

def combine_fma(a):
    a("v_mul_f32 v8, v24, v80")
    a("v_mul_f32 v9, v25, v80")
    for i in range(1, 8):
        a(f"v_fmac_f32 v8, v{24+4*i}, v{80+i}")
        a(f"v_fmac_f32 v9, v{25+4*i}, v{80+i}")

def gen(mode="a2a", fl=" nt", qfl="", W=16, stamps=False, xcd=True, sleep=0, vper=10, stfl=" sc1", ldfl=" sc1"):
    a = Asm()
    a(HEADER.rstrip("\n"))
    if mode == "2k":
        a(f"; @launch kernel={KNAME} grid=(256,1,1) block=(256,1,1) lds={LDS_SIZE}")
        a(f"; @launch kernel=combine_kernel grid=(256,1,1) block=(64,1,1) lds=0")
    else:
        a(f"; @launch grid=(256,1,1) block=(256,1,1) lds={LDS_SIZE}")
    a('.amdgcn_target "amdgcn-amd-amdhsa--gfx950"')
    a(".text")
    kernel_begin(a, KNAME)
    vm = VM(a)
    def stamp(i):
        if stamps: a(f"s_memrealtime s[{80+2*i}:{81+2*i}]")
    stamp(0)
    a("s_cmp_ge_u32 s2, 256")
    a("s_cbranch_scc1 L_end")
    a("s_load_dwordx16 s[4:19], s[0:1], 0")
    a("s_load_dwordx2 s[20:21], s[0:1], 64")
    if mode == "a2a": a("s_memrealtime s[22:23]")
    a("v_lshrrev_b32 v1, 6, v0")
    a("v_and_b32 v2, 63, v0")
    a("v_readfirstlane_b32 s3, v1")
    a("v_and_b32 v3, 15, v2")
    a("v_lshrrev_b32 v4, 4, v2")
    a("v_lshrrev_b32 v5, 2, v3")
    a("v_lshlrev_b32 v5, 8, v5")
    a("v_and_b32 v6, 3, v3")
    a("v_lshl_add_u32 v5, v6, 4, v5")
    a("v_lshl_add_u32 v5, v4, 6, v5")
    a("v_lshlrev_b32 v6, 4, v2")
    a("v_and_b32 v7, 7, v3")
    a("v_lshlrev_b32 v7, 8, v7")
    a("v_lshl_add_u32 v7, v4, 6, v7")
    a("v_mov_b32 v124, 0")
    if xcd:
        a("s_and_b32 s50, s2, 7")
        a("s_lshl_b32 s50, s50, 5")
        a("s_lshr_b32 s51, s2, 3")
        a("s_add_u32 s34, s50, s51")
    else:
        a("s_mov_b32 s34, s2")
    a("s_lshr_b32 s52, s34, 4")
    a("s_and_b32 s53, s34, 15")
    a("s_lshl_b32 s32, s34, 17")
    a("s_lshl_b32 s33, s3, 10")
    a("s_mov_b32 s35, s33")
    a("s_lshl_b32 s54, s52, 11")
    a("s_waitcnt lgkmcnt(0)")
    a("s_add_u32 s24, s6, s32")
    a("s_addc_u32 s25, s7, 0")
    a("s_mov_b32 s26, 0x20000")
    a("s_mov_b32 s27, 0x20000")
    a("s_add_u32 s40, s4, s54")
    a("s_addc_u32 s41, s5, 0")
    a("s_mov_b32 s42, 2048")
    a("s_mov_b32 s43, 0x20000")
    QB = 8
    VB = 128
    seq = [("k", i) for i in range(32)] + [("v", i) for i in range(32)]
    issued = [0]
    def issue(n=1):
        for _ in range(n):
            if issued[0] >= len(seq): return
            kind, idx = seq[issued[0]]
            if kind == "k":
                vm.op(f"buffer_load_dwordx4 a[{idx*4}:{idx*4+3}], v5, s[24:27], s35 offen{fl}", f"k{idx}")
                if idx < 31: a("s_add_u32 s35, s35, 4096")
            else:
                vm.op(f"buffer_load_dwordx4 v[{VB+idx*4}:{VB+idx*4+3}], v6, s[28:31], s33 offen{fl}", f"v{idx}")
                if idx < 31: a("s_add_u32 s33, s33, 4096")
            issued[0] += 1
    issue(2)
    for c in range(4):
        vm.op(f"buffer_load_dwordx4 v[{QB+4*c}:{QB+4*c+3}], v7, s[40:43], 0 offen offset:{c*16}{qfl}", f"q{c}")
    a("s_add_u32 s28, s8, s32")
    a("s_addc_u32 s29, s9, 0")
    a("s_mov_b32 s30, 0x20000")
    a("s_mov_b32 s31, 0x20000")
    issue(min(W, 32) - 2)
    srd(a, 36, 20, 21, "0x10000000")
    srd(a, 96, 18, 19, 256)
    a(f"s_mov_b32 s44, {f2u(C_SL):#x}")
    a("s_mov_b32 s45, 0x05040100")
    a("s_mov_b32 s46, 0x07060302")
    a("s_lshr_b32 s57, s53, 1")
    a("s_and_b32 s58, s53, 1")
    a("s_lshl_b32 s59, s52, 3")
    a("s_add_u32 s59, s59, s57")
    if mode == "a2a":
        a("s_or_b32 s50, s2, s3")
        a("s_cmp_lg_u32 s50, 0")
        a("s_cbranch_scc1 L_no_nonce")
        a("s_or_b32 s22, s22, 1")
        a("v_mov_b32 v60, s22")
        a("v_mov_b32 v61, s23")
        a("v_lshlrev_b32 v62, 6, v2")
        a("v_cmp_gt_u32 vcc, 4, v2")
        a("s_and_saveexec_b64 s[48:49], vcc")
        a("buffer_store_dwordx2 v[60:61], v62, s[96:99], 0 offen sc0 sc1")
        a("s_mov_b64 exec, s[48:49]")
        a("L_no_nonce:")
        a("s_cmp_lg_u32 s3, 0")
        a("s_cbranch_scc1 L_no_tree")
        tree_loads(a, "v2")
        a("L_no_tree:")
    if W > 32: issue(W - 32)
    SB = 24
    TB = 64
    def adds(n):
        t = TB + 16 * (n & 1)
        a(f"v_add_f32 v{SB+n}, v{t}, v{t+5}")
        a(f"v_add_f32 v{t+10}, v{t+10}, v{t+15}")
        a(f"v_add_f32 v{SB+n}, v{SB+n}, v{t+10}")
    for n in range(32):
        vm.wait(f"k{n}" if n > 1 else "q3")
        if n == 0: stamp(1)
        t = TB + 16 * (n & 1)
        for c in range(4):
            a(f"v_mfma_f32_16x16x32_bf16 v[{t+4*c}:{t+4*c+3}], a[{n*4}:{n*4+3}], v[{QB+4*c}:{QB+4*c+3}], 0")
        issue(1)
        if n == 20 and mode == "a2a":
            a("s_cmp_lg_u32 s3, 0")
            a("s_cbranch_scc1 L_no_nl")
            a("s_and_b32 s50, s2, 3")
            a("s_lshl_b32 s50, s50, 6")
            a("v_mov_b32 v113, 0")
            a("buffer_load_dwordx2 v[122:123], v113, s[96:99], s50 offen sc1")
            a("L_no_nl:")
            nonce_after = issued[0]
        if n >= 1: adds(n - 1)
    stamp(2)
    a("s_nop 4")
    adds(31)
    cnt = [0]
    def V(text):
        a(text); cnt[0] += 1
        if cnt[0] % vper == 0: issue(1)
    M = "v56"; T = "v57"
    V(f"v_max3_f32 {M}, v{SB}, v{SB+1}, v{SB+2}")
    r = 3
    while r < 32:
        if r + 1 < 32:
            V(f"v_max3_f32 {M}, {M}, v{SB+r}, v{SB+r+1}"); r += 2
        else:
            V(f"v_max_f32 {M}, {M}, v{SB+r}"); r += 1
    cross_rows(a, "v_max_f32", M, T)
    a("v_and_b32 v58, 7, v3")
    a("v_lshlrev_b32 v58, 4, v58")
    a("s_lshl_b32 s47, s3, 2")
    a("v_add_u32 v59, s47, v58")
    a("v_cmp_gt_u32 vcc, 8, v2")
    a("s_and_saveexec_b64 s[48:49], vcc")
    a(f"ds_write_b32 v59, {M} offset:{LDS_M}")
    a("s_mov_b64 exec, s[48:49]")
    if mode == "a2a":
        a("s_cmp_lg_u32 s3, 0")
        a("s_cbranch_scc1 L_no_nw")
        kind, idx = seq[nonce_after]
        assert issued[0] > nonce_after
        vm.wait(f"{kind}{idx}")
        a("L_nonce_chk:")
        a("v_readfirstlane_b32 s50, v122")
        a("s_cmp_eq_u32 s50, 0")
        a("s_cbranch_scc1 L_nonce_slow")
        a("L_nonce_ok:")
        a("v_mov_b32 v59, 0")
        a(f"ds_write_b64 v59, v[122:123] offset:{LDS_N}")
        tree_score(a)
        a("L_no_nw:")
    a("s_waitcnt lgkmcnt(0)")
    a("s_barrier")
    a(f"ds_read_b128 v[60:63], v58 offset:{LDS_M}")
    if mode == "a2a":
        a("v_mov_b32 v59, 0")
        a(f"ds_read_b64 v[114:115], v59 offset:{LDS_N}")
    issue(1)
    a("s_waitcnt lgkmcnt(0)")
    a("v_max3_f32 v60, v60, v61, v62")
    a(f"v_max_f32 {M}, v60, v63")
    a(f"v_mul_f32 {M}, s44, {M}")
    if mode == "a2a":
        a("v_mov_b32 v118, v114"); a("v_mov_b32 v119, v115")
    else:
        a("s_nop 0")
    for r in range(32):
        V(f"v_fma_f32 v{SB+r}, v{SB+r}, s44, -{M}")
    for r in range(32):
        V(f"v_exp_f32 v{SB+r}, v{SB+r}")
    a("s_nop 0")
    L = "v57"; T2 = "v58"
    V(f"v_add_f32 v60, v{SB}, v{SB+1}")
    V(f"v_add_f32 v61, v{SB+2}, v{SB+3}")
    for r in range(4, 32, 2):
        V(f"v_add_f32 v60, v60, v{SB+r}")
        V(f"v_add_f32 v61, v61, v{SB+r+1}")
    V(f"v_add_f32 {L}, v60, v61")
    cross_rows(a, "v_add_f32", L, T2)
    a("s_lshl_b32 s56, s52, 13")
    a("s_lshl_b32 s50, s53, 6")
    a("s_add_u32 s56, s56, s50")
    a("s_lshl_b32 s50, s3, 4")
    a("s_add_u32 s56, s56, s50")
    a(f"s_add_u32 s56, s56, {ML_BASE}")
    a("v_lshlrev_b32 v59, 10, v2")
    a(f"v_mov_b32 v60, {M}")
    a(f"v_mov_b32 v61, {L}")
    if mode == "a2a":
        a("v_mov_b32 v62, v114"); a("v_mov_b32 v63, v115")
    a("v_cmp_gt_u32 vcc, 8, v2")
    a("s_and_saveexec_b64 s[48:49], vcc")
    vm.op("buffer_store_dwordx4 v[60:63], v59, s[36:39], s56 offen" + stfl)
    a("s_mov_b64 exec, s[48:49]")
    PL, PH = 64, 80
    for t in range(16):
        V(f"v_cvt_pk_bf16_f32 v{PL+t}, v{SB+2*t}, v{SB+2*t+1}")
    a("v_cmp_gt_u32 vcc, 8, v3")
    a("s_nop 1")
    a("v_cndmask_b32 v60, 0, -1, vcc")
    a("v_not_b32 v61, v60")
    for r in range(16):
        V(f"v_and_b32 v{PH+r}, v61, v{PL+r}")
    for r in range(16):
        V(f"v_and_b32 v{PL+r}, v60, v{PL+r}")
    issue(64)
    stamp(3)
    a("s_mul_i32 s47, s3, %d" % WSTR)
    a("v_add_u32 v58, s47, v6")
    a("v_and_b32 v59, 3, v2")
    a(f"v_mul_u32_u24 v59, {ESTR}, v59")
    a("v_lshrrev_b32 v62, 3, v2")
    a("v_and_b32 v63, 4, v2")
    a("v_lshl_add_u32 v63, v63, 1, v62")
    a("s_lshl_b32 s47, s3, 4")
    a("v_add_u32 v63, s47, v63")
    a("v_lshl_add_u32 v59, v63, 4, v59")
    a("v_and_b32 v1, 7, v2")
    a("v_lshlrev_b32 v1, 4, v1")
    a("v_lshl_add_u32 v1, v62, 14, v1")
    a("s_lshl_b32 s55, s52, 4")
    a("s_lshr_b32 s50, s3, 1")
    a("s_add_u32 s55, s55, s50")
    a("s_lshl_b32 s55, s55, 4")
    a("s_add_u32 s55, s55, s53")
    a("s_lshl_b32 s55, s55, 9")
    a("s_and_b32 s50, s3, 1")
    a("s_lshl_b32 s50, s50, 8")
    a("s_add_u32 s55, s55, s50")
    a("s_lshl_b32 s60, s59, 10")
    a(f"s_add_u32 s60, s60, {ML_BASE}")
    a("s_lshl_b32 s61, s52, 4")
    a("s_add_u32 s61, s61, s53")
    a("s_lshl_b32 s61, s61, 13")
    a("s_add_u32 s62, s61, 4096")
    a("s_lshl_b32 s63, s59, 8")
    a("s_lshl_b32 s50, s58, 7")
    a("s_add_u32 s63, s63, s50")
    srd(a, 24, 16, 17, 32768)
    AC = 96
    TP = 8
    for u in range(4):
        vm.wait(f"v{8*u+7}")
        if u == 3:
            stamp(4)
            if mode == "a2a":
                a("s_cmp_lg_u32 s3, 0")
                a("s_cbranch_scc1 L_no_ml")
                a("buffer_load_dwordx4 v[60:63], v6, s[36:39], s60 offen sc1")
                a("L_no_ml:")
        first = (u == 0)
        ops = [(ep, half) for ep in range(4) for half in range(2)]
        def perms(k):
            ep, half = ops[k]
            e = ep + 4 * half
            dw, hi = e >> 1, e & 1
            sel = "s46" if hi else "s45"
            tb = TP + 4 * (k & 3)
            for qq in range(4):
                r0 = VB + (8 * u + 2 * qq) * 4 + dw
                r1 = VB + (8 * u + 2 * qq + 1) * 4 + dw
                a(f"v_perm_b32 v{tb+qq}, v{r1}, v{r0}, {sel}")
        def mfma(k):
            ep, half = ops[k]
            tb = TP + 4 * (k & 3)
            pb = (PH if half else PL) + 4 * u
            c = "0" if (first and half == 0) else f"v[{AC+4*ep}:{AC+4*ep+3}]"
            a(f"v_mfma_f32_16x16x32_bf16 v[{AC+4*ep}:{AC+4*ep+3}], v[{tb}:{tb+3}], v[{pb}:{pb+3}], {c}")
        perms(0)
        perms(1)
        for k in range(8):
            mfma(k)
            if k + 2 < 8: perms(k + 2)
    for ep in range(4):
        if ep == 3: a("s_nop 4")
        if ep == 2: a("s_nop 1")
        if ep == 0: a("s_nop 1")
        a(f"ds_write_b128 v58, v[{AC+4*ep}:{AC+4*ep+3}] offset:{LDS_O+ep*ESTR}")
    a("s_waitcnt lgkmcnt(0)")
    a("s_barrier")
    for w in range(4):
        a(f"ds_read_b128 v[{64+4*w}:{64+4*w+3}], v59 offset:{LDS_O+w*WSTR}")
    a("s_waitcnt lgkmcnt(2)")
    for r in range(4): a(f"v_add_f32 v{64+r}, v{64+r}, v{68+r}")
    a("s_waitcnt lgkmcnt(0)")
    for r in range(4): a(f"v_add_f32 v{72+r}, v{72+r}, v{76+r}")
    a("v_add_f32 v112, v64, v72")
    a("v_add_f32 v113, v65, v73")
    vm.op("buffer_store_dwordx4 v[112:115], v1, s[36:39], s55 offen" + stfl)
    a("v_add_f32 v116, v66, v74")
    a("v_add_f32 v117, v67, v75")
    vm.op("buffer_store_dwordx4 v[116:119], v1, s[36:39], s55 offen offset:128" + stfl)
    stamp(5)
    def o_loads():
        for i in range(8):
            so = "s61" if i < 4 else "s62"
            a(f"buffer_load_dwordx4 v[{24+4*i}:{24+4*i+3}], v6, s[36:39], {so} offen offset:{(i&3)*1024}{ldfl}")
    if mode == "a2a":
        a("s_cmp_lg_u32 s3, 0")
        a("s_cbranch_scc1 L_fin")
        o_loads()
        a("s_waitcnt vmcnt(10)")
        if stamps: a("s_memrealtime s[64:65]")
        a("s_mov_b32 s51, 0")
        a("L_ml_check:")
        a("v_cmp_ne_u64 vcc, v[62:63], v[114:115]")
        a("s_cbranch_vccnz L_ml_slow")
        a("L_ml_ok:")
        if stamps: a("s_mov_b32 s72, s51")
        weights(a, "v2")
        if stamps: a("s_memrealtime s[66:67]")
        a("s_mov_b32 s51, 0")
        a("L_sweep:")
        a("s_waitcnt vmcnt(0) lgkmcnt(0)")
        if stamps:
            a("s_cmp_lg_u32 s51, 0")
            a("s_cbranch_scc1 L_nost")
            a("s_memrealtime s[68:69]")
            a("L_nost:")
        combine_fma(a)
        a("s_mov_b64 s[48:49], exec")
        for i in range(8):
            a(f"v_cmpx_eq_u64 vcc, v[{26+4*i}:{27+4*i}], v[114:115]")
        a("s_cmp_eq_u64 exec, s[48:49]")
        a("s_mov_b64 exec, s[48:49]")
        a("s_cbranch_scc1 L_store")
        a("s_add_u32 s51, s51, 1")
        a(f"s_cmp_ge_u32 s51, {SPIN}")
        a("s_cbranch_scc1 L_store")
        if sleep: a(f"s_sleep {sleep}")
        o_loads()
        a("s_branch L_sweep")
        a("L_store:")
        stamp(6)
        a("s_nop 1")
        a("v_permlane32_swap_b32 v8, v9")
        a("s_nop 1")
        a("v_add_f32 v8, v8, v9")
        a("v_add_f32 v8, v8, v121")
        a("v_cvt_pk_bf16_f32 v8, v8, v8")
        a("buffer_store_short v8, v124, s[24:27], s63 offen")
        a("s_branch L_fin")
        a("L_nonce_slow:")
        a("s_mov_b32 s51, 0")
        a("s_and_b32 s47, s2, 3")
        a("s_lshl_b32 s47, s47, 6")
        a("v_mov_b32 v113, 0")
        a("L_nonce_loop:")
        a("buffer_load_dwordx2 v[122:123], v113, s[96:99], s47 offen sc1")
        a("s_waitcnt vmcnt(0)")
        a("v_readfirstlane_b32 s50, v122")
        a("s_cmp_lg_u32 s50, 0")
        a("s_cbranch_scc1 L_nonce_ok")
        a("s_add_u32 s51, s51, 1")
        a(f"s_cmp_lt_u32 s51, {SPIN}")
        a("s_cbranch_scc1 L_nonce_loop")
        a("s_branch L_nonce_ok")
        a("L_ml_slow:")
        a("s_add_u32 s51, s51, 1")
        a(f"s_cmp_ge_u32 s51, {SPIN}")
        a("s_cbranch_scc1 L_ml_ok")
        a("buffer_load_dwordx4 v[60:63], v6, s[36:39], s60 offen sc1")
        a("s_waitcnt vmcnt(0)")
        a("s_branch L_ml_check")
    a("L_fin:")
    if stamps:
        stamp(7)
        a("s_waitcnt vmcnt(0) lgkmcnt(0)")
        a("s_lshl_b32 s50, s2, 2")
        a("s_add_u32 s50, s50, s3")
        a("s_lshl_b32 s50, s50, 6")
        a(f"s_add_u32 s50, s50, {STAMP_BASE}")
        for j in range(8):
            a(f"v_mov_b32 v{8+j}, s{80+2*j}")
        for j, r in enumerate((64, 66, 68, 51, 72, 35, 35, 35)):
            a(f"v_mov_b32 v{16+j}, s{r}")
        a("s_getreg_b32 s35, hwreg(HW_REG_XCC_ID)")
        a("v_mov_b32 v23, s35")
        a("v_mov_b32 v1, 0")
        a("v_cmp_eq_u32 vcc, 0, v2")
        a("s_and_saveexec_b64 s[48:49], vcc")
        for j in range(4):
            a(f"buffer_store_dwordx4 v[{8+4*j}:{8+4*j+3}], v1, s[36:39], s50 offen offset:{16*j}")
    a("L_end:")
    a("s_endpgm")

    if mode == "2k":
        kernel_begin(a, "combine_kernel")
        a("s_cmp_ge_u32 s2, 256")
        a("s_cbranch_scc1 L_end2")
        a("s_load_dwordx16 s[4:19], s[0:1], 0")
        a("s_load_dwordx2 s[20:21], s[0:1], 64")
        a("s_lshr_b32 s52, s2, 4")
        a("s_and_b32 s53, s2, 15")
        a("s_lshr_b32 s57, s53, 1")
        a("s_and_b32 s58, s53, 1")
        a("s_lshl_b32 s59, s52, 3")
        a("s_add_u32 s59, s59, s57")
        a("v_mov_b32 v2, v0")
        a("v_lshlrev_b32 v6, 4, v2")
        a(f"s_mov_b32 s44, {f2u(C_SL):#x}")
        a("s_lshl_b32 s60, s59, 10")
        a(f"s_add_u32 s47, s60, {ML_BASE}")
        a("s_lshl_b32 s61, s52, 4")
        a("s_add_u32 s61, s61, s53")
        a("s_lshl_b32 s33, s61, 13")
        a("s_add_u32 s34, s33, 4096")
        a("s_waitcnt lgkmcnt(0)")
        srd(a, 36, 20, 21, "0x10000000")
        a("buffer_load_dwordx4 v[60:63], v6, s[36:39], s47 offen sc1")
        tree_loads(a, "v2")
        for i in range(8):
            so = "s33" if i < 4 else "s34"
            a(f"buffer_load_dwordx4 v[{24+4*i}:{24+4*i+3}], v6, s[36:39], {so} offen offset:{(i&3)*1024} sc1")
        srd(a, 24, 16, 17, 32768)
        a("s_lshl_b32 s63, s59, 8")
        a("s_lshl_b32 s50, s58, 7")
        a("s_add_u32 s63, s63, s50")
        a("s_waitcnt vmcnt(8)")
        tree_score(a)
        weights(a, "v2")
        a("s_waitcnt vmcnt(0) lgkmcnt(0)")
        combine_fma(a)
        a("s_nop 1")
        a("v_permlane32_swap_b32 v8, v9")
        a("s_nop 1")
        a("v_add_f32 v8, v8, v9")
        a("v_add_f32 v8, v8, v121")
        a("v_cvt_pk_bf16_f32 v8, v8, v8")
        a("buffer_store_short v8, v124, s[24:27], s63 offen")
        a("L_end2:")
        a("s_endpgm")
    a('.section .rodata,"a"')
    a(".p2align 6")
    a(descriptor(KNAME, 384, 256))
    if mode == "2k":
        a(".p2align 6")
        a(descriptor("combine_kernel", 128, 128))
    return a.text()

if __name__ == "__main__":
    import argparse
    ap = argparse.ArgumentParser()
    ap.add_argument("-o", default="b_a2a.s")
    ap.add_argument("--mode", default="a2a")
    ap.add_argument("--fl", default="nt")
    ap.add_argument("-W", type=int, default=16)
    ap.add_argument("--stamps", action="store_true")
    ap.add_argument("--noxcd", action="store_true")
    ap.add_argument("--sleep", type=int, default=0)
    ap.add_argument("--vper", type=int, default=10)
    ap.add_argument("--stfl", default="sc1")
    ap.add_argument("--ldfl", default="sc1")
    x = ap.parse_args()
    open(x.o, "w").write(gen(mode=x.mode, fl=(" " + x.fl if x.fl else ""), W=x.W, stamps=x.stamps, xcd=not x.noxcd, sleep=x.sleep, vper=x.vper, stfl=" " + x.stfl if x.stfl else "", ldfl=" " + x.ldfl if x.ldfl else ""))
```

```python
import sys, math, struct
sys.path.insert(0, "gen")
from common import *

def f2u(x): return struct.unpack("<I", struct.pack("<f", x))[0]
LOG2E = 1.4426950408889634
SCALE = 128 ** -0.5
C_SL = SCALE * LOG2E

O_BASE = 0
ML_BASE = 2 << 20
STAMP_BASE = 4 << 20
LDS_M = 0
LDS_N = 128
LDS_O = 256
ESTR = 1088
WSTR = 4 * ESTR
LDS_SIZE = LDS_O + 4 * WSTR
SPIN = 1 << 16

def wave_allreduce(a, op, v, t):
    for ctl in ("quad_perm:[1,0,3,2]", "quad_perm:[2,3,0,1]", "row_half_mirror", "row_mirror"):
        a("s_nop 1")
        a(f"{op}_dpp {v}, {v}, {v} {ctl} row_mask:0xf bank_mask:0xf")
    cross_rows(a, op, v, t)

def cross_rows(a, op, v, t):
    a(f"v_mov_b32 {t}, {v}")
    a("s_nop 1")
    a(f"v_permlane16_swap_b32 {t}, {v}")
    a("s_nop 1")
    a(f"{op} {v}, {v}, {t}")
    a(f"v_mov_b32 {t}, {v}")
    a("s_nop 1")
    a(f"v_permlane32_swap_b32 {t}, {v}")
    a("s_nop 1")
    a(f"{op} {v}, {v}, {t}")

class VM:
    def __init__(self, a): self.a = a; self.n = 0; self.tag = {}
    def op(self, text, tag=None):
        self.a(text); self.n += 1
        if tag: self.tag[tag] = self.n
    def wait(self, tag):
        left = self.n - self.tag[tag]
        assert left <= 63, left
        self.a(f"s_waitcnt vmcnt({left})")

def srd(a, base, lo, hi, size):
    a(f"s_mov_b32 s{base}, s{lo}")
    a(f"s_mov_b32 s{base+1}, s{hi}")
    a(f"s_mov_b32 s{base+2}, {size}")
    a(f"s_mov_b32 s{base+3}, 0x20000")

def tree_loads(a, lane, gc="s52"):
    a(f"v_lshlrev_b32 v112, 2, {lane}")
    a("v_mov_b32 v113, 0")
    a(f"v_and_b32 v114, 31, {lane}")
    a("v_and_b32 v115, 0x1b, v114")
    a(f"v_and_b32 v124, 3, {lane}")
    a(f"v_and_b32 v115, 4, {lane}")
    a("v_add_u32 v124, v124, v115")
    a(f"v_and_b32 v115, 8, {lane}")
    a("v_lshl_add_u32 v124, v115, 1, v124")
    a(f"v_and_b32 v115, 16, {lane}")
    a("v_lshl_add_u32 v124, v115, 1, v124")
    a(f"v_lshrrev_b32 v115, 5, {lane}")
    a("v_lshl_add_u32 v124, v115, 3, v124")
    a("v_lshlrev_b32 v124, 1, v124")
    srd(a, 64, 4, 5, 32768)
    a("s_lshl_b32 s60, s59, 8")
    a("buffer_load_dword v116, v112, s[64:67], s60 offen")
    srd(a, 68, 10, 11, 4096)
    a(f"s_lshl_b32 s61, {gc}, 8")
    a("buffer_load_dword v117, v112, s[68:71], s61 offen")
    srd(a, 72, 12, 13, 4096)
    a("s_lshl_b32 s62, s58, 7")
    a("s_add_u32 s62, s62, s61")
    a("buffer_load_ushort v118, v124, s[72:75], s62 offen")
    srd(a, 76, 14, 15, 8)
    a(f"s_lshr_b32 s63, {gc}, 2")
    a("s_lshl_b32 s63, s63, 1")
    a("buffer_load_ushort v119, v113, s[76:79], s63 offen")

def tree_score(a):
    a("v_lshlrev_b32 v120, 16, v116")
    a("v_and_b32 v121, 0xffff0000, v116")
    a("v_lshlrev_b32 v126, 16, v117")
    a("v_and_b32 v127, 0xffff0000, v117")
    a("v_mul_f32 v120, v120, v126")
    a("v_fmac_f32 v120, v121, v127")
    wave_allreduce(a, "v_add_f32", "v120", "v121")
    a("v_lshlrev_b32 v119, 16, v119")
    a("v_sub_f32 v119, 1.0, v119")
    a(f"v_mul_f32 v119, {f2u(-1e9*LOG2E):#x}, v119")
    a("v_fma_f32 v120, v120, s44, v119")
    a("v_lshlrev_b32 v121, 16, v118")

def weights(a, lane):
    a("v_max_f32 v8, v60, v120")
    wave_allreduce(a, "v_max_f32", "v8", "v9")
    a("v_sub_f32 v10, v60, v8")
    a("v_sub_f32 v11, v120, v8")
    a("v_exp_f32 v10, v10")
    a("v_exp_f32 v11, v11")
    a(f"v_lshrrev_b32 v13, 5, {lane}")
    a("v_mul_f32 v12, v10, v61")
    a("v_lshlrev_b32 v13, 4, v13")
    wave_allreduce(a, "v_add_f32", "v12", "v9")
    a("v_add_f32 v12, v12, v11")
    a("v_rcp_f32 v12, v12")
    a("s_nop 0")
    a("v_mul_f32 v10, v10, v12")
    a("v_mul_f32 v11, v11, v12")
    a("v_mul_f32 v121, v11, v121")
    for i in range(8):
        a(f"ds_bpermute_b32 v{80+i}, v13, v10 offset:{32*i}")

def combine_fma(a):
    a("v_mul_f32 v8, v24, v80")
    a("v_mul_f32 v9, v25, v80")
    for i in range(1, 8):
        a(f"v_fmac_f32 v8, v{24+4*i}, v{80+i}")
        a(f"v_fmac_f32 v9, v{25+4*i}, v{80+i}")

def gen(mode="a2a", fl=" nt", qfl="", W=16, W0=24, stamps=False, xcd=True, sleep=0, vper=10, stfl=" sc1", ldfl=" sc1", gx=2, selpoll=True, fasttail=True):
    a = Asm()
    a(HEADER.rstrip("\n"))
    if mode == "2k":
        a(f"; @launch kernel={KNAME} grid=(256,1,1) block=(256,1,1) lds={LDS_SIZE}")
        a(f"; @launch kernel=combine_kernel grid=(256,1,1) block=(64,1,1) lds=0")
    else:
        a(f"; @launch grid=(256,1,1) block=(256,1,1) lds={LDS_SIZE}")
    a('.amdgcn_target "amdgcn-amd-amdhsa--gfx950"')
    a(".text")
    kernel_begin(a, KNAME)
    vm = VM(a)
    def stamp(i):
        if stamps: a(f"s_memrealtime s[{80+2*i}:{81+2*i}]")
    stamp(0)
    a("s_cmp_ge_u32 s2, 256")
    a("s_cbranch_scc1 L_end")
    a("s_load_dwordx16 s[4:19], s[0:1], 0")
    a("v_lshrrev_b32 v1, 6, v0")
    a("v_and_b32 v2, 63, v0")
    a("v_readfirstlane_b32 s3, v1")
    a("v_and_b32 v3, 15, v2")
    a("v_lshrrev_b32 v4, 4, v2")
    a("v_lshrrev_b32 v5, 2, v3")
    a("v_lshlrev_b32 v5, 8, v5")
    a("v_and_b32 v6, 3, v3")
    a("v_lshl_add_u32 v5, v6, 4, v5")
    a("v_lshl_add_u32 v5, v4, 6, v5")
    a("v_lshlrev_b32 v6, 4, v2")
    a("v_and_b32 v7, 7, v3")
    a("v_lshlrev_b32 v7, 8, v7")
    a("v_lshl_add_u32 v7, v4, 6, v7")
    a("v_mov_b32 v124, 0")
    if xcd:
        a("s_and_b32 s50, s2, 7")
        a("s_lshl_b32 s50, s50, 5")
        a("s_lshr_b32 s51, s2, 3")
        a("s_add_u32 s34, s50, s51")
    else:
        a("s_mov_b32 s34, s2")
    a("s_lshr_b32 s52, s34, 4")
    a("s_and_b32 s53, s34, 15")
    a("s_lshl_b32 s32, s34, 17")
    a("s_lshl_b32 s33, s3, 10")
    a("s_mov_b32 s35, s33")
    a("s_lshl_b32 s54, s52, 11")
    a("s_waitcnt lgkmcnt(0)")
    a("s_add_u32 s24, s6, s32")
    a("s_addc_u32 s25, s7, 0")
    a("s_mov_b32 s26, 0x20000")
    a("s_mov_b32 s27, 0x20000")
    a("s_add_u32 s40, s4, s54")
    a("s_addc_u32 s41, s5, 0")
    a("s_mov_b32 s42, 2048")
    a("s_mov_b32 s43, 0x20000")
    QB = 8
    VB = 128
    seq = [("k", i) for i in range(32)] + [("v", i) for i in range(32)]
    issued = [0]
    def issue(n=1):
        for _ in range(n):
            if issued[0] >= len(seq): return
            kind, idx = seq[issued[0]]
            if kind == "k":
                vm.op(f"buffer_load_dwordx4 a[{idx*4}:{idx*4+3}], v5, s[24:27], s35 offen{fl}", f"k{idx}")
                if idx < 31: a("s_add_u32 s35, s35, 4096")
            else:
                vm.op(f"buffer_load_dwordx4 v[{VB+idx*4}:{VB+idx*4+3}], v6, s[28:31], s33 offen{fl}", f"v{idx}")
                if idx < 31: a("s_add_u32 s33, s33, 4096")
            issued[0] += 1
    issue(1)
    for c in range(4):
        vm.op(f"buffer_load_dwordx4 v[{QB+4*c}:{QB+4*c+3}], v7, s[40:43], 0 offen offset:{c*16}{qfl}", f"q{c}")
    a("s_load_dwordx2 s[20:21], s[0:1], 64")
    if mode == "a2a": a("s_memrealtime s[22:23]")
    a("s_add_u32 s28, s8, s32")
    a("s_addc_u32 s29, s9, 0")
    a("s_mov_b32 s30, 0x20000")
    a("s_mov_b32 s31, 0x20000")
    issue(min(W0, 32) - 1)
    a("s_waitcnt lgkmcnt(0)")
    srd(a, 36, 20, 21, "0x10000000")
    srd(a, 96, 18, 19, 256)
    a(f"s_mov_b32 s44, {f2u(C_SL):#x}")
    a("s_mov_b32 s45, 0x05040100")
    a("s_mov_b32 s46, 0x07060302")
    a("s_lshr_b32 s57, s53, 1")
    a("s_and_b32 s58, s53, 1")
    a(f"s_xor_b32 s100, s52, {gx}")
    a("s_lshl_b32 s59, s100, 3")
    a("s_add_u32 s59, s59, s57")
    if mode == "a2a":
        a("s_or_b32 s50, s2, s3")
        a("s_cmp_lg_u32 s50, 0")
        a("s_cbranch_scc1 L_no_nonce")
        a("s_or_b32 s22, s22, 1")
        a("v_mov_b32 v60, s22")
        a("v_mov_b32 v61, s23")
        a("v_lshlrev_b32 v62, 6, v2")
        a("v_cmp_gt_u32 vcc, 4, v2")
        a("s_and_saveexec_b64 s[48:49], vcc")
        a("buffer_store_dwordx2 v[60:61], v62, s[96:99], 0 offen sc0 sc1")
        a("s_mov_b64 exec, s[48:49]")
        a("L_no_nonce:")
        a("s_cmp_lg_u32 s3, 0")
        a("s_cbranch_scc1 L_no_tree")
        tree_loads(a, "v2", "s100")
        a("L_no_tree:")
    if W0 > 32: issue(W0 - 32)
    SB = 24
    TB = 64
    def adds(n):
        t = TB + 16 * (n & 1)
        a(f"v_add_f32 v{SB+n}, v{t}, v{t+5}")
        a(f"v_add_f32 v{t+10}, v{t+10}, v{t+15}")
        a(f"v_add_f32 v{SB+n}, v{SB+n}, v{t+10}")
    for n in range(32):
        vm.wait(f"k{n}" if n > 0 else "q3")
        if n == 0: stamp(1)
        t = TB + 16 * (n & 1)
        for c in range(4):
            a(f"v_mfma_f32_16x16x32_bf16 v[{t+4*c}:{t+4*c+3}], a[{n*4}:{n*4+3}], v[{QB+4*c}:{QB+4*c+3}], 0")
        if issued[0] - (n + 1) < W: issue(1)
        else: a("s_nop 1")
        if n == 20 and mode == "a2a":
            a("s_cmp_lg_u32 s3, 0")
            a("s_cbranch_scc1 L_no_nl")
            a("s_and_b32 s50, s2, 3")
            a("s_lshl_b32 s50, s50, 6")
            a("v_mov_b32 v113, 0")
            a("buffer_load_dwordx2 v[122:123], v113, s[96:99], s50 offen sc1")
            a("L_no_nl:")
            nonce_after = issued[0]
        if n >= 1: adds(n - 1)
    stamp(2)
    a("s_nop 4")
    adds(31)
    cnt = [0]
    def V(text):
        a(text); cnt[0] += 1
        if cnt[0] % vper == 0: issue(1)
    M = "v56"; T = "v57"
    V(f"v_max3_f32 {M}, v{SB}, v{SB+1}, v{SB+2}")
    r = 3
    while r < 32:
        if r + 1 < 32:
            V(f"v_max3_f32 {M}, {M}, v{SB+r}, v{SB+r+1}"); r += 2
        else:
            V(f"v_max_f32 {M}, {M}, v{SB+r}"); r += 1
    cross_rows(a, "v_max_f32", M, T)
    a("v_and_b32 v58, 7, v3")
    a("v_lshlrev_b32 v58, 4, v58")
    a("s_lshl_b32 s47, s3, 2")
    a("v_add_u32 v59, s47, v58")
    a("v_cmp_gt_u32 vcc, 8, v2")
    a("s_and_saveexec_b64 s[48:49], vcc")
    a(f"ds_write_b32 v59, {M} offset:{LDS_M}")
    a("s_mov_b64 exec, s[48:49]")
    if mode == "a2a":
        a("s_cmp_lg_u32 s3, 0")
        a("s_cbranch_scc1 L_no_nw")
        kind, idx = seq[nonce_after]
        assert issued[0] > nonce_after
        vm.wait(f"{kind}{idx}")
        a("L_nonce_chk:")
        a("v_readfirstlane_b32 s50, v122")
        a("s_cmp_eq_u32 s50, 0")
        a("s_cbranch_scc1 L_nonce_slow")
        a("L_nonce_ok:")
        a("v_mov_b32 v59, 0")
        a(f"ds_write_b64 v59, v[122:123] offset:{LDS_N}")
        tree_score(a)
        a("L_no_nw:")
    a("s_waitcnt lgkmcnt(0)")
    a("s_barrier")
    a(f"ds_read_b128 v[60:63], v58 offset:{LDS_M}")
    if mode == "a2a":
        a("v_mov_b32 v59, 0")
        a(f"ds_read_b64 v[114:115], v59 offset:{LDS_N}")
    issue(1)
    a("s_waitcnt lgkmcnt(0)")
    a("v_max3_f32 v60, v60, v61, v62")
    a(f"v_max_f32 {M}, v60, v63")
    a(f"v_mul_f32 {M}, s44, {M}")
    if mode == "a2a":
        a("v_mov_b32 v118, v114"); a("v_mov_b32 v119, v115")
    else:
        a("s_nop 0")
    for r in range(32):
        V(f"v_fma_f32 v{SB+r}, v{SB+r}, s44, -{M}")
    for r in range(32):
        V(f"v_exp_f32 v{SB+r}, v{SB+r}")
    a("s_nop 0")
    L = "v57"; T2 = "v58"
    V(f"v_add_f32 v60, v{SB}, v{SB+1}")
    V(f"v_add_f32 v61, v{SB+2}, v{SB+3}")
    for r in range(4, 32, 2):
        V(f"v_add_f32 v60, v60, v{SB+r}")
        V(f"v_add_f32 v61, v61, v{SB+r+1}")
    V(f"v_add_f32 {L}, v60, v61")
    cross_rows(a, "v_add_f32", L, T2)
    a("s_lshl_b32 s56, s52, 13")
    a("s_lshl_b32 s50, s53, 6")
    a("s_add_u32 s56, s56, s50")
    a("s_lshl_b32 s50, s3, 4")
    a("s_add_u32 s56, s56, s50")
    a(f"s_add_u32 s56, s56, {ML_BASE}")
    a("v_lshlrev_b32 v59, 10, v2")
    a(f"v_mov_b32 v60, {M}")
    a(f"v_mov_b32 v61, {L}")
    if mode == "a2a":
        a("v_mov_b32 v62, v114"); a("v_mov_b32 v63, v115")
    a("v_cmp_gt_u32 vcc, 8, v2")
    a("s_and_saveexec_b64 s[48:49], vcc")
    vm.op("buffer_store_dwordx4 v[60:63], v59, s[36:39], s56 offen" + stfl)
    a("s_mov_b64 exec, s[48:49]")
    PL, PH = 64, 80
    for t in range(16):
        V(f"v_cvt_pk_bf16_f32 v{PL+t}, v{SB+2*t}, v{SB+2*t+1}")
    a("v_cmp_gt_u32 vcc, 8, v3")
    a("s_nop 1")
    a("v_cndmask_b32 v60, 0, -1, vcc")
    a("v_not_b32 v61, v60")
    for r in range(16):
        V(f"v_and_b32 v{PH+r}, v61, v{PL+r}")
    for r in range(16):
        V(f"v_and_b32 v{PL+r}, v60, v{PL+r}")
    issue(64)
    stamp(3)
    a("s_mul_i32 s47, s3, %d" % WSTR)
    a("v_add_u32 v58, s47, v6")
    a("v_and_b32 v59, 3, v2")
    a(f"v_mul_u32_u24 v59, {ESTR}, v59")
    a("v_lshrrev_b32 v62, 3, v2")
    a("v_and_b32 v63, 4, v2")
    a("v_lshl_add_u32 v63, v63, 1, v62")
    a("s_lshl_b32 s47, s3, 4")
    a("v_add_u32 v63, s47, v63")
    a("v_lshl_add_u32 v59, v63, 4, v59")
    a("v_and_b32 v1, 7, v2")
    a("v_lshlrev_b32 v1, 4, v1")
    a("v_lshl_add_u32 v1, v62, 14, v1")
    a("s_lshl_b32 s55, s52, 4")
    a("s_lshr_b32 s50, s3, 1")
    a("s_add_u32 s55, s55, s50")
    a("s_lshl_b32 s55, s55, 4")
    a("s_add_u32 s55, s55, s53")
    a("s_lshl_b32 s55, s55, 9")
    a("s_and_b32 s50, s3, 1")
    a("s_lshl_b32 s50, s50, 8")
    a("s_add_u32 s55, s55, s50")
    a("s_lshl_b32 s60, s59, 10")
    a(f"s_add_u32 s60, s60, {ML_BASE}")
    a("s_lshl_b32 s61, s100, 4")
    a("s_add_u32 s61, s61, s53")
    a("s_lshl_b32 s61, s61, 13")
    a("s_add_u32 s62, s61, 4096")
    a("s_lshl_b32 s63, s59, 8")
    a("s_lshl_b32 s50, s58, 7")
    a("s_add_u32 s63, s63, s50")
    srd(a, 24, 16, 17, 32768)
    AC = 96
    TP = 8
    for u in range(4):
        if u == 3 and fasttail:
            ops = [(ep, half) for ep in range(4) for half in range(2)]
            TQ = 24
            def perm1(k, qq):
                ep, half = ops[k]
                e = ep + 4 * half
                dw, hi = e >> 1, e & 1
                sel = "s46" if hi else "s45"
                r0 = VB + (8 * u + 2 * qq) * 4 + dw
                r1 = VB + (8 * u + 2 * qq + 1) * 4 + dw
                a(f"v_perm_b32 v{TQ+4*k+qq}, v{r1}, v{r0}, {sel}")
            def mf(k):
                ep, half = ops[k]
                pb = (PH if half else PL) + 4 * u
                a(f"v_mfma_f32_16x16x32_bf16 v[{AC+4*ep}:{AC+4*ep+3}], v[{TQ+4*k}:{TQ+4*k+3}], v[{pb}:{pb+3}], v[{AC+4*ep}:{AC+4*ep+3}]")
            for qq in range(3):
                vm.wait(f"v{8*u+2*qq+1}")
                for k in range(8): perm1(k, qq)
            if mode == "a2a": a("s_cmp_lg_u32 s3, 0")
            vm.wait(f"v{8*u+7}")
            stamp(4)
            if mode == "a2a":
                a("s_cbranch_scc1 L_no_ml")
                a("buffer_load_dwordx4 v[60:63], v6, s[36:39], s60 offen sc1")
                a("L_no_ml:")
            perm1(0, 3); perm1(1, 3); perm1(2, 3)
            mf(0); perm1(3, 3)
            mf(1); perm1(4, 3)
            mf(2); perm1(5, 3)
            mf(3); perm1(6, 3); perm1(7, 3)
            mf(4)
            mf(5)
            a("s_nop 1")
            a(f"ds_write_b128 v58, v[{AC}:{AC+3}] offset:{LDS_O}")
            mf(6)
            mf(7)
            a("s_nop 1")
            a(f"ds_write_b128 v58, v[{AC+4}:{AC+7}] offset:{LDS_O+ESTR}")
            a("s_nop 1")
            a(f"ds_write_b128 v58, v[{AC+8}:{AC+11}] offset:{LDS_O+2*ESTR}")
            a("s_nop 1")
            a(f"ds_write_b128 v58, v[{AC+12}:{AC+15}] offset:{LDS_O+3*ESTR}")
            continue
        vm.wait(f"v{8*u+7}")
        if u == 3:
            stamp(4)
            if mode == "a2a":
                a("s_cmp_lg_u32 s3, 0")
                a("s_cbranch_scc1 L_no_ml")
                a("buffer_load_dwordx4 v[60:63], v6, s[36:39], s60 offen sc1")
                a("L_no_ml:")
        first = (u == 0)
        ops = [(ep, half) for ep in range(4) for half in range(2)]
        def perms(k):
            ep, half = ops[k]
            e = ep + 4 * half
            dw, hi = e >> 1, e & 1
            sel = "s46" if hi else "s45"
            tb = TP + 4 * (k & 3)
            for qq in range(4):
                r0 = VB + (8 * u + 2 * qq) * 4 + dw
                r1 = VB + (8 * u + 2 * qq + 1) * 4 + dw
                a(f"v_perm_b32 v{tb+qq}, v{r1}, v{r0}, {sel}")
        def mfma(k):
            ep, half = ops[k]
            tb = TP + 4 * (k & 3)
            pb = (PH if half else PL) + 4 * u
            c = "0" if (first and half == 0) else f"v[{AC+4*ep}:{AC+4*ep+3}]"
            a(f"v_mfma_f32_16x16x32_bf16 v[{AC+4*ep}:{AC+4*ep+3}], v[{tb}:{tb+3}], v[{pb}:{pb+3}], {c}")
        perms(0)
        perms(1)
        for k in range(8):
            mfma(k)
            if k + 2 < 8: perms(k + 2)
    if not fasttail:
        for ep in range(4):
            if ep == 3: a("s_nop 4")
            if ep == 2: a("s_nop 1")
            if ep == 0: a("s_nop 1")
            a(f"ds_write_b128 v58, v[{AC+4*ep}:{AC+4*ep+3}] offset:{LDS_O+ep*ESTR}")
    a("s_waitcnt lgkmcnt(0)")
    a("s_barrier")
    for w in range(4):
        a(f"ds_read_b128 v[{64+4*w}:{64+4*w+3}], v59 offset:{LDS_O+w*WSTR}")
    a("s_waitcnt lgkmcnt(2)")
    for r in range(4): a(f"v_add_f32 v{64+r}, v{64+r}, v{68+r}")
    a("s_waitcnt lgkmcnt(0)")
    for r in range(4): a(f"v_add_f32 v{72+r}, v{72+r}, v{76+r}")
    a("v_add_f32 v112, v64, v72")
    a("v_add_f32 v113, v65, v73")
    vm.op("buffer_store_dwordx4 v[112:115], v1, s[36:39], s55 offen" + stfl)
    a("v_add_f32 v116, v66, v74")
    a("v_add_f32 v117, v67, v75")
    vm.op("buffer_store_dwordx4 v[116:119], v1, s[36:39], s55 offen offset:128" + stfl)
    stamp(5)
    def o_loads():
        for i in range(8):
            so = "s61" if i < 4 else "s62"
            a(f"buffer_load_dwordx4 v[{24+4*i}:{24+4*i+3}], v6, s[36:39], {so} offen offset:{(i&3)*1024}{ldfl}")
    if mode == "a2a":
        a("s_cmp_lg_u32 s3, 0")
        a("s_cbranch_scc1 L_fin")
        o_loads()
        a("s_waitcnt vmcnt(10)")
        if stamps: a("s_memrealtime s[22:23]")
        a("s_mov_b32 s51, 0")
        a("L_ml_check:")
        a("v_cmp_ne_u64 vcc, v[62:63], v[114:115]")
        a("s_cbranch_vccnz L_ml_slow")
        a("L_ml_ok:")
        if stamps: a("s_mov_b32 s47, s51")
        weights(a, "v2")
        if stamps: a("s_memrealtime s[32:33]")
        a("s_mov_b32 s51, 0")
        if selpoll:
            for i in range(8): a(f"s_mov_b64 s[{64+2*i}:{65+2*i}], -1")
            a("L_sweep:")
            a("s_waitcnt vmcnt(0)")
            for i in range(8):
                a(f"s_mov_b64 exec, s[{64+2*i}:{65+2*i}]")
                a(f"v_cmp_ne_u64 s[{64+2*i}:{65+2*i}], v[{26+4*i}:{27+4*i}], v[114:115]")
            a("s_or_b64 s[48:49], s[64:65], s[66:67]")
            for i in range(2, 8): a(f"s_or_b64 s[48:49], s[48:49], s[{64+2*i}:{65+2*i}]")
            a("s_cbranch_scc0 L_got")
            a("s_add_u32 s51, s51, 1")
            a(f"s_cmp_ge_u32 s51, {SPIN}")
            a("s_cbranch_scc1 L_got")
            if sleep: a(f"s_sleep {sleep}")
            for i in range(8):
                so = "s61" if i < 4 else "s62"
                a(f"s_mov_b64 exec, s[{64+2*i}:{65+2*i}]")
                a(f"buffer_load_dwordx4 v[{24+4*i}:{24+4*i+3}], v6, s[36:39], {so} offen offset:{(i&3)*1024}{ldfl}")
            a("s_branch L_sweep")
            a("L_got:")
            a("s_mov_b64 exec, -1")
            a("s_waitcnt lgkmcnt(0)")
            combine_fma(a)
        else:
            a("L_sweep:")
            a("s_waitcnt vmcnt(0) lgkmcnt(0)")
            combine_fma(a)
            a("s_mov_b64 s[48:49], exec")
            for i in range(8):
                a(f"v_cmpx_eq_u64 vcc, v[{26+4*i}:{27+4*i}], v[114:115]")
            a("s_cmp_eq_u64 exec, s[48:49]")
            a("s_mov_b64 exec, s[48:49]")
            a("s_cbranch_scc1 L_store")
            a("s_add_u32 s51, s51, 1")
            a(f"s_cmp_ge_u32 s51, {SPIN}")
            a("s_cbranch_scc1 L_store")
            if sleep: a(f"s_sleep {sleep}")
            o_loads()
            a("s_branch L_sweep")
        a("L_store:")
        stamp(6)
        a("s_nop 1")
        a("v_permlane32_swap_b32 v8, v9")
        a("s_nop 1")
        a("v_add_f32 v8, v8, v9")
        a("v_add_f32 v8, v8, v121")
        a("v_cvt_pk_bf16_f32 v8, v8, v8")
        a("buffer_store_short v8, v124, s[24:27], s63 offen")
        a("s_branch L_fin")
        a("L_nonce_slow:")
        a("s_mov_b32 s51, 0")
        a("s_and_b32 s47, s2, 3")
        a("s_lshl_b32 s47, s47, 6")
        a("v_mov_b32 v113, 0")
        a("L_nonce_loop:")
        a("buffer_load_dwordx2 v[122:123], v113, s[96:99], s47 offen sc1")
        a("s_waitcnt vmcnt(0)")
        a("v_readfirstlane_b32 s50, v122")
        a("s_cmp_lg_u32 s50, 0")
        a("s_cbranch_scc1 L_nonce_ok")
        a("s_add_u32 s51, s51, 1")
        a(f"s_cmp_lt_u32 s51, {SPIN}")
        a("s_cbranch_scc1 L_nonce_loop")
        a("s_branch L_nonce_ok")
        a("L_ml_slow:")
        a("s_add_u32 s51, s51, 1")
        a(f"s_cmp_ge_u32 s51, {SPIN}")
        a("s_cbranch_scc1 L_ml_ok")
        a("buffer_load_dwordx4 v[60:63], v6, s[36:39], s60 offen sc1")
        a("s_waitcnt vmcnt(0)")
        a("s_branch L_ml_check")
    a("L_fin:")
    if stamps:
        stamp(7)
        a("s_waitcnt vmcnt(0) lgkmcnt(0)")
        a("s_lshl_b32 s50, s2, 2")
        a("s_add_u32 s50, s50, s3")
        a("s_lshl_b32 s50, s50, 6")
        a(f"s_add_u32 s50, s50, {STAMP_BASE}")
        for j in range(8):
            a(f"v_mov_b32 v{8+j}, s{80+2*j}")
        for j, r in enumerate((22, 32, 32, 51, 47, 35, 35, 35)):
            a(f"v_mov_b32 v{16+j}, s{r}")
        a("s_getreg_b32 s35, hwreg(HW_REG_XCC_ID)")
        a("v_mov_b32 v23, s35")
        a("v_mov_b32 v1, 0")
        a("v_cmp_eq_u32 vcc, 0, v2")
        a("s_and_saveexec_b64 s[48:49], vcc")
        for j in range(4):
            a(f"buffer_store_dwordx4 v[{8+4*j}:{8+4*j+3}], v1, s[36:39], s50 offen offset:{16*j}")
    a("L_end:")
    a("s_endpgm")

    if mode == "2k":
        kernel_begin(a, "combine_kernel")
        a("s_cmp_ge_u32 s2, 256")
        a("s_cbranch_scc1 L_end2")
        a("s_load_dwordx16 s[4:19], s[0:1], 0")
        a("s_load_dwordx2 s[20:21], s[0:1], 64")
        a("s_lshr_b32 s52, s2, 4")
        a("s_and_b32 s53, s2, 15")
        a("s_lshr_b32 s57, s53, 1")
        a("s_and_b32 s58, s53, 1")
        a("s_lshl_b32 s59, s52, 3")
        a("s_add_u32 s59, s59, s57")
        a("v_mov_b32 v2, v0")
        a("v_lshlrev_b32 v6, 4, v2")
        a(f"s_mov_b32 s44, {f2u(C_SL):#x}")
        a("s_lshl_b32 s60, s59, 10")
        a(f"s_add_u32 s47, s60, {ML_BASE}")
        a("s_lshl_b32 s61, s52, 4")
        a("s_add_u32 s61, s61, s53")
        a("s_lshl_b32 s33, s61, 13")
        a("s_add_u32 s34, s33, 4096")
        a("s_waitcnt lgkmcnt(0)")
        srd(a, 36, 20, 21, "0x10000000")
        a("buffer_load_dwordx4 v[60:63], v6, s[36:39], s47 offen sc1")
        tree_loads(a, "v2")
        for i in range(8):
            so = "s33" if i < 4 else "s34"
            a(f"buffer_load_dwordx4 v[{24+4*i}:{24+4*i+3}], v6, s[36:39], {so} offen offset:{(i&3)*1024} sc1")
        srd(a, 24, 16, 17, 32768)
        a("s_lshl_b32 s63, s59, 8")
        a("s_lshl_b32 s50, s58, 7")
        a("s_add_u32 s63, s63, s50")
        a("s_waitcnt vmcnt(8)")
        tree_score(a)
        weights(a, "v2")
        a("s_waitcnt vmcnt(0) lgkmcnt(0)")
        combine_fma(a)
        a("s_nop 1")
        a("v_permlane32_swap_b32 v8, v9")
        a("s_nop 1")
        a("v_add_f32 v8, v8, v9")
        a("v_add_f32 v8, v8, v121")
        a("v_cvt_pk_bf16_f32 v8, v8, v8")
        a("buffer_store_short v8, v124, s[24:27], s63 offen")
        a("L_end2:")
        a("s_endpgm")
    a('.section .rodata,"a"')
    a(".p2align 6")
    a(descriptor(KNAME, 384, 256))
    if mode == "2k":
        a(".p2align 6")
        a(descriptor("combine_kernel", 128, 128))
    return a.text()

if __name__ == "__main__":
    import argparse
    ap = argparse.ArgumentParser()
    ap.add_argument("-o", default="b_a2a.s")
    ap.add_argument("--mode", default="a2a")
    ap.add_argument("--fl", default="nt")
    ap.add_argument("-W", type=int, default=16)
    ap.add_argument("--stamps", action="store_true")
    ap.add_argument("--noxcd", action="store_true")
    ap.add_argument("--sleep", type=int, default=0)
    ap.add_argument("--vper", type=int, default=10)
    ap.add_argument("--gx", type=int, default=2)
    ap.add_argument("--W0", type=int, default=24)
    ap.add_argument("--nosel", action="store_true")
    ap.add_argument("--nofast", action="store_true")
    ap.add_argument("--stfl", default="sc1")
    ap.add_argument("--ldfl", default="sc1")
    x = ap.parse_args()
    open(x.o, "w").write(gen(mode=x.mode, fl=(" " + x.fl if x.fl else ""), W=x.W, stamps=x.stamps, xcd=not x.noxcd, sleep=x.sleep, vper=x.vper, stfl=" " + x.stfl if x.stfl else "", ldfl=" " + x.ldfl if x.ldfl else "", gx=x.gx, W0=x.W0, selpoll=not x.nosel, fasttail=not x.nofast))
```

```python
import sys, math, struct
sys.path.insert(0, "gen")
from common import *

def f2u(x): return struct.unpack("<I", struct.pack("<f", x))[0]
LOG2E = 1.4426950408889634
SCALE = 128 ** -0.5
C_SL = SCALE * LOG2E

O_BASE = 0
ML_BASE = 2 << 20
STAMP_BASE = 4 << 20
LDS_M = 0
LDS_N = 128
LDS_O = 256
ESTR = 1088
WSTR = 4 * ESTR
LDS_SIZE = LDS_O + 4 * WSTR
SPIN = 1 << 16

def wave_allreduce(a, op, v, t):
    for ctl in ("quad_perm:[1,0,3,2]", "quad_perm:[2,3,0,1]", "row_half_mirror", "row_mirror"):
        a("s_nop 1")
        a(f"{op}_dpp {v}, {v}, {v} {ctl} row_mask:0xf bank_mask:0xf")
    cross_rows(a, op, v, t)

def cross_rows(a, op, v, t):
    a(f"v_mov_b32 {t}, {v}")
    a("s_nop 1")
    a(f"v_permlane16_swap_b32 {t}, {v}")
    a("s_nop 1")
    a(f"{op} {v}, {v}, {t}")
    a(f"v_mov_b32 {t}, {v}")
    a("s_nop 1")
    a(f"v_permlane32_swap_b32 {t}, {v}")
    a("s_nop 1")
    a(f"{op} {v}, {v}, {t}")

class VM:
    def __init__(self, a): self.a = a; self.n = 0; self.tag = {}
    def op(self, text, tag=None):
        self.a(text); self.n += 1
        if tag: self.tag[tag] = self.n
    def wait(self, tag):
        left = self.n - self.tag[tag]
        assert left <= 63, left
        self.a(f"s_waitcnt vmcnt({left})")

def srd(a, base, lo, hi, size):
    a(f"s_mov_b32 s{base}, s{lo}")
    a(f"s_mov_b32 s{base+1}, s{hi}")
    a(f"s_mov_b32 s{base+2}, {size}")
    a(f"s_mov_b32 s{base+3}, 0x20000")

def tree_loads(a, lane, gc="s52"):
    a(f"v_lshlrev_b32 v112, 2, {lane}")
    a("v_mov_b32 v113, 0")
    a(f"v_and_b32 v114, 31, {lane}")
    a("v_and_b32 v115, 0x1b, v114")
    a(f"v_and_b32 v124, 3, {lane}")
    a(f"v_and_b32 v115, 4, {lane}")
    a("v_add_u32 v124, v124, v115")
    a(f"v_and_b32 v115, 8, {lane}")
    a("v_lshl_add_u32 v124, v115, 1, v124")
    a(f"v_and_b32 v115, 16, {lane}")
    a("v_lshl_add_u32 v124, v115, 1, v124")
    a(f"v_lshrrev_b32 v115, 5, {lane}")
    a("v_lshl_add_u32 v124, v115, 3, v124")
    a("v_lshlrev_b32 v124, 1, v124")
    srd(a, 64, 4, 5, 32768)
    a("s_lshl_b32 s60, s59, 8")
    a("buffer_load_dword v116, v112, s[64:67], s60 offen")
    srd(a, 68, 10, 11, 4096)
    a(f"s_lshl_b32 s61, {gc}, 8")
    a("buffer_load_dword v117, v112, s[68:71], s61 offen")
    srd(a, 72, 12, 13, 4096)
    a("s_lshl_b32 s62, s58, 7")
    a("s_add_u32 s62, s62, s61")
    a("buffer_load_ushort v118, v124, s[72:75], s62 offen")
    srd(a, 76, 14, 15, 8)
    a(f"s_lshr_b32 s63, {gc}, 2")
    a("s_lshl_b32 s63, s63, 1")
    a("buffer_load_ushort v119, v113, s[76:79], s63 offen")

def tree_score(a):
    a("v_lshlrev_b32 v120, 16, v116")
    a("v_and_b32 v121, 0xffff0000, v116")
    a("v_lshlrev_b32 v126, 16, v117")
    a("v_and_b32 v127, 0xffff0000, v117")
    a("v_mul_f32 v120, v120, v126")
    a("v_fmac_f32 v120, v121, v127")
    wave_allreduce(a, "v_add_f32", "v120", "v121")
    a("v_lshlrev_b32 v119, 16, v119")
    a("v_sub_f32 v119, 1.0, v119")
    a(f"v_mul_f32 v119, {f2u(-1e9*LOG2E):#x}, v119")
    a("v_fma_f32 v120, v120, s44, v119")
    a("v_lshlrev_b32 v121, 16, v118")

def weights(a, lane):
    a("v_max_f32 v8, v60, v120")
    wave_allreduce(a, "v_max_f32", "v8", "v9")
    a("v_sub_f32 v10, v60, v8")
    a("v_sub_f32 v11, v120, v8")
    a("v_exp_f32 v10, v10")
    a("v_exp_f32 v11, v11")
    a(f"v_lshrrev_b32 v13, 5, {lane}")
    a("v_mul_f32 v12, v10, v61")
    a("v_lshlrev_b32 v13, 4, v13")
    wave_allreduce(a, "v_add_f32", "v12", "v9")
    a("v_add_f32 v12, v12, v11")
    a("v_rcp_f32 v12, v12")
    a("s_nop 0")
    a("v_mul_f32 v10, v10, v12")
    a("v_mul_f32 v11, v11, v12")
    a("v_mul_f32 v121, v11, v121")
    for i in range(8):
        a(f"ds_bpermute_b32 v{80+i}, v13, v10 offset:{32*i}")

def combine_fma(a):
    a("v_mul_f32 v8, v24, v80")
    a("v_mul_f32 v9, v25, v80")
    for i in range(1, 8):
        a(f"v_fmac_f32 v8, v{24+4*i}, v{80+i}")
        a(f"v_fmac_f32 v9, v{25+4*i}, v{80+i}")

def gen(mode="a2a", fl=" nt", qfl="", W=16, W0=24, stamps=False, xcd=True, sleep=0, vper=10, stfl=" sc1", ldfl=" sc1", gx=2, selpoll=True, fasttail=True, outfl=""):
    a = Asm()
    a(HEADER.rstrip("\n"))
    if mode == "2k":
        a(f"; @launch kernel={KNAME} grid=(256,1,1) block=(256,1,1) lds={LDS_SIZE}")
        a(f"; @launch kernel=combine_kernel grid=(256,1,1) block=(64,1,1) lds=0")
    else:
        a(f"; @launch grid=(256,1,1) block=(256,1,1) lds={LDS_SIZE}")
    a('.amdgcn_target "amdgcn-amd-amdhsa--gfx950"')
    a(".text")
    kernel_begin(a, KNAME)
    vm = VM(a)
    def stamp(i):
        if stamps: a(f"s_memrealtime s[{80+2*i}:{81+2*i}]")
    stamp(0)
    a("s_cmp_ge_u32 s2, 256")
    a("s_cbranch_scc1 L_end")
    a("s_load_dwordx16 s[4:19], s[0:1], 0")
    a("v_lshrrev_b32 v1, 6, v0")
    a("v_and_b32 v2, 63, v0")
    a("v_readfirstlane_b32 s3, v1")
    a("v_and_b32 v3, 15, v2")
    a("v_lshrrev_b32 v4, 4, v2")
    a("v_lshrrev_b32 v5, 2, v3")
    a("v_lshlrev_b32 v5, 8, v5")
    a("v_and_b32 v6, 3, v3")
    a("v_lshl_add_u32 v5, v6, 4, v5")
    a("v_lshl_add_u32 v5, v4, 6, v5")
    a("v_lshlrev_b32 v6, 4, v2")
    a("v_and_b32 v7, 7, v3")
    a("v_lshlrev_b32 v7, 8, v7")
    a("v_lshl_add_u32 v7, v4, 6, v7")
    a("v_mov_b32 v124, 0")
    if xcd:
        a("s_and_b32 s50, s2, 7")
        a("s_lshl_b32 s50, s50, 5")
        a("s_lshr_b32 s51, s2, 3")
        a("s_add_u32 s34, s50, s51")
    else:
        a("s_mov_b32 s34, s2")
    a("s_lshr_b32 s52, s34, 4")
    a("s_and_b32 s53, s34, 15")
    a("s_lshl_b32 s32, s34, 17")
    a("s_lshl_b32 s33, s3, 10")
    a("s_mov_b32 s35, s33")
    a("s_lshl_b32 s54, s52, 11")
    a("s_waitcnt lgkmcnt(0)")
    a("s_add_u32 s24, s6, s32")
    a("s_addc_u32 s25, s7, 0")
    a("s_mov_b32 s26, 0x20000")
    a("s_mov_b32 s27, 0x20000")
    a("s_add_u32 s40, s4, s54")
    a("s_addc_u32 s41, s5, 0")
    a("s_mov_b32 s42, 2048")
    a("s_mov_b32 s43, 0x20000")
    QB = 8
    VB = 128
    seq = [("k", i) for i in range(32)] + [("v", i) for i in range(32)]
    issued = [0]
    def issue(n=1):
        for _ in range(n):
            if issued[0] >= len(seq): return
            kind, idx = seq[issued[0]]
            if kind == "k":
                vm.op(f"buffer_load_dwordx4 a[{idx*4}:{idx*4+3}], v5, s[24:27], s35 offen{fl}", f"k{idx}")
                if idx < 31: a("s_add_u32 s35, s35, 4096")
            else:
                vm.op(f"buffer_load_dwordx4 v[{VB+idx*4}:{VB+idx*4+3}], v6, s[28:31], s33 offen{fl}", f"v{idx}")
                if idx < 31: a("s_add_u32 s33, s33, 4096")
            issued[0] += 1
    issue(1)
    for c in range(4):
        vm.op(f"buffer_load_dwordx4 v[{QB+4*c}:{QB+4*c+3}], v7, s[40:43], 0 offen offset:{c*16}{qfl}", f"q{c}")
    a("s_load_dwordx2 s[20:21], s[0:1], 64")
    if mode == "a2a": a("s_memrealtime s[22:23]")
    a("s_add_u32 s28, s8, s32")
    a("s_addc_u32 s29, s9, 0")
    a("s_mov_b32 s30, 0x20000")
    a("s_mov_b32 s31, 0x20000")
    issue(min(W0, 32) - 1)
    a("s_waitcnt lgkmcnt(0)")
    srd(a, 36, 20, 21, "0x10000000")
    srd(a, 96, 18, 19, 256)
    a(f"s_mov_b32 s44, {f2u(C_SL):#x}")
    a("s_mov_b32 s45, 0x05040100")
    a("s_mov_b32 s46, 0x07060302")
    a("s_lshr_b32 s57, s53, 1")
    a("s_and_b32 s58, s53, 1")
    a(f"s_xor_b32 s100, s52, {gx}")
    a("s_lshl_b32 s59, s100, 3")
    a("s_add_u32 s59, s59, s57")
    if mode == "a2a":
        a("s_or_b32 s50, s2, s3")
        a("s_cmp_lg_u32 s50, 0")
        a("s_cbranch_scc1 L_no_nonce")
        a("s_or_b32 s22, s22, 1")
        a("v_mov_b32 v60, s22")
        a("v_mov_b32 v61, s23")
        a("v_lshlrev_b32 v62, 6, v2")
        a("v_cmp_gt_u32 vcc, 4, v2")
        a("s_and_saveexec_b64 s[48:49], vcc")
        a("buffer_store_dwordx2 v[60:61], v62, s[96:99], 0 offen sc0 sc1")
        a("s_mov_b64 exec, s[48:49]")
        a("L_no_nonce:")
        a("s_cmp_lg_u32 s3, 0")
        a("s_cbranch_scc1 L_no_tree")
        tree_loads(a, "v2", "s100")
        a("L_no_tree:")
    if W0 > 32: issue(W0 - 32)
    SB = 24
    TB = 64
    def adds(n):
        t = TB + 16 * (n & 1)
        a(f"v_add_f32 v{SB+n}, v{t}, v{t+5}")
        a(f"v_add_f32 v{t+10}, v{t+10}, v{t+15}")
        a(f"v_add_f32 v{SB+n}, v{SB+n}, v{t+10}")
    for n in range(32):
        vm.wait(f"k{n}" if n > 0 else "q3")
        if n == 0: stamp(1)
        t = TB + 16 * (n & 1)
        for c in range(4):
            a(f"v_mfma_f32_16x16x32_bf16 v[{t+4*c}:{t+4*c+3}], a[{n*4}:{n*4+3}], v[{QB+4*c}:{QB+4*c+3}], 0")
        if issued[0] - (n + 1) < W: issue(1)
        else: a("s_nop 1")
        if n == 20 and mode == "a2a":
            a("s_cmp_lg_u32 s3, 0")
            a("s_cbranch_scc1 L_no_nl")
            a("s_and_b32 s50, s2, 3")
            a("s_lshl_b32 s50, s50, 6")
            a("v_mov_b32 v113, 0")
            a("buffer_load_dwordx2 v[122:123], v113, s[96:99], s50 offen sc1")
            a("L_no_nl:")
            nonce_after = issued[0]
        if n >= 1: adds(n - 1)
    stamp(2)
    a("s_nop 4")
    adds(31)
    cnt = [0]
    def V(text):
        a(text); cnt[0] += 1
        if cnt[0] % vper == 0: issue(1)
    M = "v56"; T = "v57"
    V(f"v_max3_f32 {M}, v{SB}, v{SB+1}, v{SB+2}")
    r = 3
    while r < 32:
        if r + 1 < 32:
            V(f"v_max3_f32 {M}, {M}, v{SB+r}, v{SB+r+1}"); r += 2
        else:
            V(f"v_max_f32 {M}, {M}, v{SB+r}"); r += 1
    cross_rows(a, "v_max_f32", M, T)
    a("v_and_b32 v58, 7, v3")
    a("v_lshlrev_b32 v58, 4, v58")
    a("s_lshl_b32 s47, s3, 2")
    a("v_add_u32 v59, s47, v58")
    a("v_cmp_gt_u32 vcc, 8, v2")
    a("s_and_saveexec_b64 s[48:49], vcc")
    a(f"ds_write_b32 v59, {M} offset:{LDS_M}")
    a("s_mov_b64 exec, s[48:49]")
    if mode == "a2a":
        a("s_cmp_lg_u32 s3, 0")
        a("s_cbranch_scc1 L_no_nw")
        kind, idx = seq[nonce_after]
        assert issued[0] > nonce_after
        vm.wait(f"{kind}{idx}")
        a("L_nonce_chk:")
        a("v_readfirstlane_b32 s50, v122")
        a("s_cmp_eq_u32 s50, 0")
        a("s_cbranch_scc1 L_nonce_slow")
        a("L_nonce_ok:")
        a("v_mov_b32 v59, 0")
        a(f"ds_write_b64 v59, v[122:123] offset:{LDS_N}")
        tree_score(a)
        a("L_no_nw:")
    a("s_waitcnt lgkmcnt(0)")
    a("s_barrier")
    a(f"ds_read_b128 v[60:63], v58 offset:{LDS_M}")
    if mode == "a2a":
        a("v_mov_b32 v59, 0")
        a(f"ds_read_b64 v[114:115], v59 offset:{LDS_N}")
    issue(1)
    a("s_waitcnt lgkmcnt(0)")
    a("v_max3_f32 v60, v60, v61, v62")
    a(f"v_max_f32 {M}, v60, v63")
    a(f"v_mul_f32 {M}, s44, {M}")
    if mode == "a2a":
        a("v_mov_b32 v118, v114"); a("v_mov_b32 v119, v115")
    else:
        a("s_nop 0")
    for r in range(32):
        V(f"v_fma_f32 v{SB+r}, v{SB+r}, s44, -{M}")
    for r in range(32):
        V(f"v_exp_f32 v{SB+r}, v{SB+r}")
    a("s_nop 0")
    L = "v57"; T2 = "v58"
    V(f"v_add_f32 v60, v{SB}, v{SB+1}")
    V(f"v_add_f32 v61, v{SB+2}, v{SB+3}")
    for r in range(4, 32, 2):
        V(f"v_add_f32 v60, v60, v{SB+r}")
        V(f"v_add_f32 v61, v61, v{SB+r+1}")
    V(f"v_add_f32 {L}, v60, v61")
    cross_rows(a, "v_add_f32", L, T2)
    a("s_lshl_b32 s56, s52, 13")
    a("s_lshl_b32 s50, s53, 6")
    a("s_add_u32 s56, s56, s50")
    a("s_lshl_b32 s50, s3, 4")
    a("s_add_u32 s56, s56, s50")
    a(f"s_add_u32 s56, s56, {ML_BASE}")
    a("v_lshlrev_b32 v59, 10, v2")
    a(f"v_mov_b32 v60, {M}")
    a(f"v_mov_b32 v61, {L}")
    if mode == "a2a":
        a("v_mov_b32 v62, v114"); a("v_mov_b32 v63, v115")
    a("v_cmp_gt_u32 vcc, 8, v2")
    a("s_and_saveexec_b64 s[48:49], vcc")
    vm.op("buffer_store_dwordx4 v[60:63], v59, s[36:39], s56 offen" + stfl)
    a("s_mov_b64 exec, s[48:49]")
    PL, PH = 64, 80
    for t in range(16):
        V(f"v_cvt_pk_bf16_f32 v{PL+t}, v{SB+2*t}, v{SB+2*t+1}")
    a("v_cmp_gt_u32 vcc, 8, v3")
    a("s_nop 1")
    a("v_cndmask_b32 v60, 0, -1, vcc")
    a("v_not_b32 v61, v60")
    for r in range(16):
        V(f"v_and_b32 v{PH+r}, v61, v{PL+r}")
    for r in range(16):
        V(f"v_and_b32 v{PL+r}, v60, v{PL+r}")
    issue(64)
    stamp(3)
    a("s_mul_i32 s47, s3, %d" % WSTR)
    a("v_add_u32 v58, s47, v6")
    a("v_and_b32 v59, 3, v2")
    a(f"v_mul_u32_u24 v59, {ESTR}, v59")
    a("v_lshrrev_b32 v62, 3, v2")
    a("v_and_b32 v63, 4, v2")
    a("v_lshl_add_u32 v63, v63, 1, v62")
    a("s_lshl_b32 s47, s3, 4")
    a("v_add_u32 v63, s47, v63")
    a("v_lshl_add_u32 v59, v63, 4, v59")
    a("v_and_b32 v1, 7, v2")
    a("v_lshlrev_b32 v1, 4, v1")
    a("v_lshl_add_u32 v1, v62, 14, v1")
    a("s_lshl_b32 s55, s52, 4")
    a("s_lshr_b32 s50, s3, 1")
    a("s_add_u32 s55, s55, s50")
    a("s_lshl_b32 s55, s55, 4")
    a("s_add_u32 s55, s55, s53")
    a("s_lshl_b32 s55, s55, 9")
    a("s_and_b32 s50, s3, 1")
    a("s_lshl_b32 s50, s50, 8")
    a("s_add_u32 s55, s55, s50")
    a("s_lshl_b32 s60, s59, 10")
    a(f"s_add_u32 s60, s60, {ML_BASE}")
    a("s_lshl_b32 s61, s100, 4")
    a("s_add_u32 s61, s61, s53")
    a("s_lshl_b32 s61, s61, 13")
    a("s_add_u32 s62, s61, 4096")
    a("s_lshl_b32 s63, s59, 8")
    a("s_lshl_b32 s50, s58, 7")
    a("s_add_u32 s63, s63, s50")
    srd(a, 24, 16, 17, 32768)
    AC = 96
    TP = 8
    for u in range(4):
        if u == 3 and fasttail:
            ops = [(ep, half) for ep in range(4) for half in range(2)]
            TQ = 24
            def perm1(k, qq):
                ep, half = ops[k]
                e = ep + 4 * half
                dw, hi = e >> 1, e & 1
                sel = "s46" if hi else "s45"
                r0 = VB + (8 * u + 2 * qq) * 4 + dw
                r1 = VB + (8 * u + 2 * qq + 1) * 4 + dw
                a(f"v_perm_b32 v{TQ+4*k+qq}, v{r1}, v{r0}, {sel}")
            def mf(k):
                ep, half = ops[k]
                pb = (PH if half else PL) + 4 * u
                a(f"v_mfma_f32_16x16x32_bf16 v[{AC+4*ep}:{AC+4*ep+3}], v[{TQ+4*k}:{TQ+4*k+3}], v[{pb}:{pb+3}], v[{AC+4*ep}:{AC+4*ep+3}]")
            for qq in range(3):
                vm.wait(f"v{8*u+2*qq+1}")
                for k in range(8): perm1(k, qq)
            if mode == "a2a": a("s_cmp_lg_u32 s3, 0")
            vm.wait(f"v{8*u+7}")
            stamp(4)
            if mode == "a2a":
                a("s_cbranch_scc1 L_no_ml")
                a("buffer_load_dwordx4 v[60:63], v6, s[36:39], s60 offen sc1")
                a("L_no_ml:")
            perm1(0, 3); perm1(1, 3); perm1(2, 3)
            mf(0); perm1(3, 3)
            mf(1); perm1(4, 3)
            mf(2); perm1(5, 3)
            mf(3); perm1(6, 3); perm1(7, 3)
            mf(4)
            mf(5)
            a("s_nop 1")
            a(f"ds_write_b128 v58, v[{AC}:{AC+3}] offset:{LDS_O}")
            mf(6)
            mf(7)
            a("s_nop 1")
            a(f"ds_write_b128 v58, v[{AC+4}:{AC+7}] offset:{LDS_O+ESTR}")
            a("s_nop 1")
            a(f"ds_write_b128 v58, v[{AC+8}:{AC+11}] offset:{LDS_O+2*ESTR}")
            a("s_nop 1")
            a(f"ds_write_b128 v58, v[{AC+12}:{AC+15}] offset:{LDS_O+3*ESTR}")
            continue
        vm.wait(f"v{8*u+7}")
        if u == 3:
            stamp(4)
            if mode == "a2a":
                a("s_cmp_lg_u32 s3, 0")
                a("s_cbranch_scc1 L_no_ml")
                a("buffer_load_dwordx4 v[60:63], v6, s[36:39], s60 offen sc1")
                a("L_no_ml:")
        first = (u == 0)
        ops = [(ep, half) for ep in range(4) for half in range(2)]
        def perms(k):
            ep, half = ops[k]
            e = ep + 4 * half
            dw, hi = e >> 1, e & 1
            sel = "s46" if hi else "s45"
            tb = TP + 4 * (k & 3)
            for qq in range(4):
                r0 = VB + (8 * u + 2 * qq) * 4 + dw
                r1 = VB + (8 * u + 2 * qq + 1) * 4 + dw
                a(f"v_perm_b32 v{tb+qq}, v{r1}, v{r0}, {sel}")
        def mfma(k):
            ep, half = ops[k]
            tb = TP + 4 * (k & 3)
            pb = (PH if half else PL) + 4 * u
            c = "0" if (first and half == 0) else f"v[{AC+4*ep}:{AC+4*ep+3}]"
            a(f"v_mfma_f32_16x16x32_bf16 v[{AC+4*ep}:{AC+4*ep+3}], v[{tb}:{tb+3}], v[{pb}:{pb+3}], {c}")
        perms(0)
        perms(1)
        for k in range(8):
            mfma(k)
            if k + 2 < 8: perms(k + 2)
    if not fasttail:
        for ep in range(4):
            if ep == 3: a("s_nop 4")
            if ep == 2: a("s_nop 1")
            if ep == 0: a("s_nop 1")
            a(f"ds_write_b128 v58, v[{AC+4*ep}:{AC+4*ep+3}] offset:{LDS_O+ep*ESTR}")
    a("s_waitcnt lgkmcnt(0)")
    a("s_barrier")
    for w in range(4):
        a(f"ds_read_b128 v[{64+4*w}:{64+4*w+3}], v59 offset:{LDS_O+w*WSTR}")
    a("s_waitcnt lgkmcnt(2)")
    for r in range(4): a(f"v_add_f32 v{64+r}, v{64+r}, v{68+r}")
    a("s_waitcnt lgkmcnt(0)")
    for r in range(4): a(f"v_add_f32 v{72+r}, v{72+r}, v{76+r}")
    a("v_add_f32 v112, v64, v72")
    a("v_add_f32 v113, v65, v73")
    vm.op("buffer_store_dwordx4 v[112:115], v1, s[36:39], s55 offen" + stfl)
    a("v_add_f32 v116, v66, v74")
    a("v_add_f32 v117, v67, v75")
    vm.op("buffer_store_dwordx4 v[116:119], v1, s[36:39], s55 offen offset:128" + stfl)
    stamp(5)
    def o_loads():
        for i in range(8):
            so = "s61" if i < 4 else "s62"
            a(f"buffer_load_dwordx4 v[{24+4*i}:{24+4*i+3}], v6, s[36:39], {so} offen offset:{(i&3)*1024}{ldfl}")
    if mode == "a2a":
        a("s_cmp_lg_u32 s3, 0")
        a("s_cbranch_scc1 L_fin")
        o_loads()
        a("s_waitcnt vmcnt(10)")
        if stamps: a("s_memrealtime s[22:23]")
        a("s_mov_b32 s51, 0")
        a("L_ml_check:")
        a("v_cmp_ne_u64 vcc, v[62:63], v[114:115]")
        a("s_cbranch_vccnz L_ml_slow")
        a("L_ml_ok:")
        if stamps: a("s_mov_b32 s47, s51")
        weights(a, "v2")
        if stamps: a("s_memrealtime s[32:33]")
        a("s_mov_b32 s51, 0")
        if selpoll:
            for i in range(8): a(f"s_mov_b64 s[{64+2*i}:{65+2*i}], -1")
            a("L_sweep:")
            a("s_waitcnt vmcnt(0)")
            for i in range(8):
                a(f"s_mov_b64 exec, s[{64+2*i}:{65+2*i}]")
                a(f"v_cmp_ne_u64 s[{64+2*i}:{65+2*i}], v[{26+4*i}:{27+4*i}], v[114:115]")
            a("s_or_b64 s[48:49], s[64:65], s[66:67]")
            for i in range(2, 8): a(f"s_or_b64 s[48:49], s[48:49], s[{64+2*i}:{65+2*i}]")
            a("s_cbranch_scc0 L_got")
            a("s_add_u32 s51, s51, 1")
            a(f"s_cmp_ge_u32 s51, {SPIN}")
            a("s_cbranch_scc1 L_got")
            if sleep: a(f"s_sleep {sleep}")
            for i in range(8):
                so = "s61" if i < 4 else "s62"
                a(f"s_mov_b64 exec, s[{64+2*i}:{65+2*i}]")
                a(f"buffer_load_dwordx4 v[{24+4*i}:{24+4*i+3}], v6, s[36:39], {so} offen offset:{(i&3)*1024}{ldfl}")
            a("s_branch L_sweep")
            a("L_got:")
            a("s_mov_b64 exec, -1")
            a("s_waitcnt lgkmcnt(0)")
            combine_fma(a)
        else:
            a("L_sweep:")
            a("s_waitcnt vmcnt(0) lgkmcnt(0)")
            combine_fma(a)
            a("s_mov_b64 s[48:49], exec")
            for i in range(8):
                a(f"v_cmpx_eq_u64 vcc, v[{26+4*i}:{27+4*i}], v[114:115]")
            a("s_cmp_eq_u64 exec, s[48:49]")
            a("s_mov_b64 exec, s[48:49]")
            a("s_cbranch_scc1 L_store")
            a("s_add_u32 s51, s51, 1")
            a(f"s_cmp_ge_u32 s51, {SPIN}")
            a("s_cbranch_scc1 L_store")
            if sleep: a(f"s_sleep {sleep}")
            o_loads()
            a("s_branch L_sweep")
        a("L_store:")
        stamp(6)
        a("s_nop 1")
        a("v_permlane32_swap_b32 v8, v9")
        a("s_nop 1")
        a("v_add_f32 v8, v8, v9")
        a("v_add_f32 v8, v8, v121")
        a("v_cvt_pk_bf16_f32 v8, v8, v8")
        a("buffer_store_short v8, v124, s[24:27], s63 offen" + outfl)
        a("s_branch L_fin")
        a("L_nonce_slow:")
        a("s_mov_b32 s51, 0")
        a("s_and_b32 s47, s2, 3")
        a("s_lshl_b32 s47, s47, 6")
        a("v_mov_b32 v113, 0")
        a("L_nonce_loop:")
        a("buffer_load_dwordx2 v[122:123], v113, s[96:99], s47 offen sc1")
        a("s_waitcnt vmcnt(0)")
        a("v_readfirstlane_b32 s50, v122")
        a("s_cmp_lg_u32 s50, 0")
        a("s_cbranch_scc1 L_nonce_ok")
        a("s_add_u32 s51, s51, 1")
        a(f"s_cmp_lt_u32 s51, {SPIN}")
        a("s_cbranch_scc1 L_nonce_loop")
        a("s_branch L_nonce_ok")
        a("L_ml_slow:")
        a("s_add_u32 s51, s51, 1")
        a(f"s_cmp_ge_u32 s51, {SPIN}")
        a("s_cbranch_scc1 L_ml_ok")
        a("buffer_load_dwordx4 v[60:63], v6, s[36:39], s60 offen sc1")
        a("s_waitcnt vmcnt(0)")
        a("s_branch L_ml_check")
    a("L_fin:")
    if stamps:
        stamp(7)
        a("s_waitcnt vmcnt(0) lgkmcnt(0)")
        a("s_lshl_b32 s50, s2, 2")
        a("s_add_u32 s50, s50, s3")
        a("s_lshl_b32 s50, s50, 6")
        a(f"s_add_u32 s50, s50, {STAMP_BASE}")
        for j in range(8):
            a(f"v_mov_b32 v{8+j}, s{80+2*j}")
        for j, r in enumerate((22, 32, 32, 51, 47, 35, 35, 35)):
            a(f"v_mov_b32 v{16+j}, s{r}")
        a("s_getreg_b32 s35, hwreg(HW_REG_XCC_ID)")
        a("v_mov_b32 v23, s35")
        a("v_mov_b32 v1, 0")
        a("v_cmp_eq_u32 vcc, 0, v2")
        a("s_and_saveexec_b64 s[48:49], vcc")
        for j in range(4):
            a(f"buffer_store_dwordx4 v[{8+4*j}:{8+4*j+3}], v1, s[36:39], s50 offen offset:{16*j}")
    a("L_end:")
    a("s_endpgm")

    if mode == "2k":
        kernel_begin(a, "combine_kernel")
        a("s_cmp_ge_u32 s2, 256")
        a("s_cbranch_scc1 L_end2")
        a("s_load_dwordx16 s[4:19], s[0:1], 0")
        a("s_load_dwordx2 s[20:21], s[0:1], 64")
        a("s_lshr_b32 s52, s2, 4")
        a("s_and_b32 s53, s2, 15")
        a("s_lshr_b32 s57, s53, 1")
        a("s_and_b32 s58, s53, 1")
        a("s_lshl_b32 s59, s52, 3")
        a("s_add_u32 s59, s59, s57")
        a("v_mov_b32 v2, v0")
        a("v_lshlrev_b32 v6, 4, v2")
        a(f"s_mov_b32 s44, {f2u(C_SL):#x}")
        a("s_lshl_b32 s60, s59, 10")
        a(f"s_add_u32 s47, s60, {ML_BASE}")
        a("s_lshl_b32 s61, s52, 4")
        a("s_add_u32 s61, s61, s53")
        a("s_lshl_b32 s33, s61, 13")
        a("s_add_u32 s34, s33, 4096")
        a("s_waitcnt lgkmcnt(0)")
        srd(a, 36, 20, 21, "0x10000000")
        a("buffer_load_dwordx4 v[60:63], v6, s[36:39], s47 offen sc1")
        tree_loads(a, "v2")
        for i in range(8):
            so = "s33" if i < 4 else "s34"
            a(f"buffer_load_dwordx4 v[{24+4*i}:{24+4*i+3}], v6, s[36:39], {so} offen offset:{(i&3)*1024} sc1")
        srd(a, 24, 16, 17, 32768)
        a("s_lshl_b32 s63, s59, 8")
        a("s_lshl_b32 s50, s58, 7")
        a("s_add_u32 s63, s63, s50")
        a("s_waitcnt vmcnt(8)")
        tree_score(a)
        weights(a, "v2")
        a("s_waitcnt vmcnt(0) lgkmcnt(0)")
        combine_fma(a)
        a("s_nop 1")
        a("v_permlane32_swap_b32 v8, v9")
        a("s_nop 1")
        a("v_add_f32 v8, v8, v9")
        a("v_add_f32 v8, v8, v121")
        a("v_cvt_pk_bf16_f32 v8, v8, v8")
        a("buffer_store_short v8, v124, s[24:27], s63 offen")
        a("L_end2:")
        a("s_endpgm")
    a('.section .rodata,"a"')
    a(".p2align 6")
    a(descriptor(KNAME, 384, 256))
    if mode == "2k":
        a(".p2align 6")
        a(descriptor("combine_kernel", 128, 128))
    return a.text()

if __name__ == "__main__":
    import argparse
    ap = argparse.ArgumentParser()
    ap.add_argument("-o", default="b_a2a.s")
    ap.add_argument("--mode", default="a2a")
    ap.add_argument("--fl", default="nt")
    ap.add_argument("-W", type=int, default=16)
    ap.add_argument("--stamps", action="store_true")
    ap.add_argument("--noxcd", action="store_true")
    ap.add_argument("--sleep", type=int, default=0)
    ap.add_argument("--vper", type=int, default=10)
    ap.add_argument("--gx", type=int, default=2)
    ap.add_argument("--W0", type=int, default=24)
    ap.add_argument("--nosel", action="store_true")
    ap.add_argument("--outfl", default="")
    ap.add_argument("--nofast", action="store_true")
    ap.add_argument("--stfl", default="sc1")
    ap.add_argument("--ldfl", default="sc1")
    x = ap.parse_args()
    open(x.o, "w").write(gen(mode=x.mode, fl=(" " + x.fl if x.fl else ""), W=x.W, stamps=x.stamps, xcd=not x.noxcd, sleep=x.sleep, vper=x.vper, stfl=" " + x.stfl if x.stfl else "", ldfl=" " + x.ldfl if x.ldfl else "", gx=x.gx, W0=x.W0, selpoll=not x.nosel, fasttail=not x.nofast, outfl=(" " + x.outfl if x.outfl else "")))
```

```python
import sys, math, struct
sys.path.insert(0, "gen")
from common import *

def f2u(x): return struct.unpack("<I", struct.pack("<f", x))[0]
LOG2E = 1.4426950408889634
SCALE = 128 ** -0.5
C_SL = SCALE * LOG2E

O_BASE = 0
ML_BASE = 1 << 20
MLA_OFF = 1 << 17
STAMP_BASE = 4 << 20
LDS_M = 0
LDS_N = 128
LDS_O = 256
ESTR = 1088
WSTR = 4 * ESTR
LDS_SIZE = LDS_O + 4 * WSTR
SPIN = 1 << 16

def cross_rows(a, op, v, t):
    a(f"v_mov_b32 {t}, {v}")
    a("s_nop 1")
    a(f"v_permlane16_swap_b32 {t}, {v}")
    a("s_nop 1")
    a(f"{op} {v}, {v}, {t}")
    a(f"v_mov_b32 {t}, {v}")
    a("s_nop 1")
    a(f"v_permlane32_swap_b32 {t}, {v}")
    a("s_nop 1")
    a(f"{op} {v}, {v}, {t}")

def wave_allreduce(a, op, v, t):
    for ctl in ("quad_perm:[1,0,3,2]", "quad_perm:[2,3,0,1]", "row_half_mirror", "row_mirror"):
        a("s_nop 1")
        a(f"{op}_dpp {v}, {v}, {v} {ctl} row_mask:0xf bank_mask:0xf")
    cross_rows(a, op, v, t)

class VM:
    def __init__(self, a): self.a = a; self.n = 0; self.tag = {}
    def op(self, text, tag=None):
        self.a(text); self.n += 1
        if tag: self.tag[tag] = self.n
    def wait(self, tag):
        left = self.n - self.tag[tag]
        assert left <= 63, left
        self.a(f"s_waitcnt vmcnt({left})")

def srd(a, base, lo, hi, size):
    a(f"s_mov_b32 s{base}, s{lo}")
    a(f"s_mov_b32 s{base+1}, s{hi}")
    a(f"s_mov_b32 s{base+2}, {size}")
    a(f"s_mov_b32 s{base+3}, 0x20000")

def weights(a, m, l):
    a(f"v_max_f32 v8, {m}, v120")
    wave_allreduce(a, "v_max_f32", "v8", "v9")
    a(f"v_sub_f32 v10, {m}, v8")
    a("v_sub_f32 v11, v120, v8")
    a("v_exp_f32 v10, v10")
    a("v_exp_f32 v11, v11")
    a("v_lshlrev_b32 v13, 4, v4")
    a(f"v_mul_f32 v12, v10, {l}")
    wave_allreduce(a, "v_add_f32", "v12", "v9")
    a("v_add_f32 v12, v12, v11")
    a("v_rcp_f32 v12, v12")
    a("s_nop 0")
    a("v_mul_f32 v10, v10, v12")
    a("v_mul_f32 v11, v11, v12")
    a("v_mul_f32 v121, v11, v121")
    for i in range(4):
        a(f"ds_bpermute_b32 v{80+i}, v13, v10 offset:{64*i}")

def gen(fl=" nt", W=20, W0=32, stamps=False, xcd=True, vper=10, stfl=" sc1", ldfl=" sc1", gx=0, outfl="", selre=True, sleep=0, nsets=0, ostfl="", force_slow=False, mlpos=0):
    a = Asm()
    a(HEADER.rstrip("\n"))
    a(f"; @launch grid=(256,1,1) block=(256,1,1) lds={LDS_SIZE}")
    a('.amdgcn_target "amdgcn-amd-amdhsa--gfx950"')
    a(".text")
    kernel_begin(a, KNAME)
    vm = VM(a)
    def stamp(i):
        if stamps: a(f"s_memrealtime s[{80+2*i}:{81+2*i}]")
    stamp(0)
    a("s_cmp_ge_u32 s2, 256")
    a("s_cbranch_scc1 L_end")
    a("s_load_dwordx16 s[4:19], s[0:1], 0")
    a("v_lshrrev_b32 v1, 6, v0")
    a("v_and_b32 v2, 63, v0")
    a("v_readfirstlane_b32 s3, v1")
    a("v_and_b32 v3, 15, v2")
    a("v_lshrrev_b32 v4, 4, v2")
    a("v_lshrrev_b32 v5, 2, v3")
    a("v_lshlrev_b32 v5, 8, v5")
    a("v_and_b32 v6, 3, v3")
    a("v_lshl_add_u32 v5, v6, 4, v5")
    a("v_lshl_add_u32 v5, v4, 6, v5")
    a("v_lshlrev_b32 v6, 4, v2")
    a("v_and_b32 v7, 7, v3")
    a("v_lshlrev_b32 v7, 8, v7")
    a("v_lshl_add_u32 v7, v4, 6, v7")
    a("v_mov_b32 v124, 0")
    if xcd:
        a("s_and_b32 s50, s2, 7")
        a("s_lshl_b32 s50, s50, 5")
        a("s_lshr_b32 s51, s2, 3")
        a("s_add_u32 s34, s50, s51")
    else:
        a("s_mov_b32 s34, s2")
    a("s_lshr_b32 s52, s34, 4")
    a("s_and_b32 s53, s34, 15")
    a("s_lshl_b32 s32, s34, 17")
    a("s_lshl_b32 s33, s3, 10")
    a("s_mov_b32 s35, s33")
    a("s_lshl_b32 s54, s52, 11")
    a("s_mov_b32 s26, 0x20000")
    a("s_mov_b32 s27, 0x20000")
    a("s_mov_b32 s42, 2048")
    a("s_mov_b32 s43, 0x20000")
    a("s_mov_b32 s30, 0x20000")
    a("s_mov_b32 s31, 0x20000")
    a("s_waitcnt lgkmcnt(0)")
    a("s_add_u32 s24, s6, s32")
    a("s_addc_u32 s25, s7, 0")
    QB = 8
    VB = 128
    seq = [("k", i) for i in range(32)] + [("v", i) for i in range(32)]
    issued = [0]
    limit = [64]
    def issue(n=1):
        for _ in range(n):
            if issued[0] >= min(len(seq), limit[0]): return
            kind, idx = seq[issued[0]]
            if kind == "k":
                vm.op(f"buffer_load_dwordx4 a[{idx*4}:{idx*4+3}], v5, s[24:27], s35 offen{fl}", f"k{idx}")
                if idx < 31: a("s_add_u32 s35, s35, 4096")
            else:
                vm.op(f"buffer_load_dwordx4 v[{VB+idx*4}:{VB+idx*4+3}], v6, s[28:31], s33 offen{fl}", f"v{idx}")
                if idx < 31: a("s_add_u32 s33, s33, 4096")
            issued[0] += 1
    issue(1)
    a("s_add_u32 s40, s4, s54")
    a("s_addc_u32 s41, s5, 0")
    for c in range(4):
        vm.op(f"buffer_load_dwordx4 v[{QB+4*c}:{QB+4*c+3}], v7, s[40:43], 0 offen offset:{c*16}", f"q{c}")
    a("s_load_dwordx2 s[20:21], s[0:1], 64")
    a("s_memrealtime s[22:23]")
    a("s_add_u32 s28, s8, s32")
    a("s_addc_u32 s29, s9, 0")
    issue(min(W0, 32) - 1)
    a("s_waitcnt lgkmcnt(0)")
    srd(a, 36, 20, 21, "0x10000000")
    srd(a, 96, 18, 19, 256)
    a(f"s_mov_b32 s44, {f2u(C_SL):#x}")
    a("s_mov_b32 s45, 0x05040100")
    a("s_mov_b32 s46, 0x07060302")
    a("s_movk_i32 s101, 0xff")
    a("s_getreg_b32 s34, hwreg(HW_REG_XCC_ID, 0, 4)")
    a("s_lshr_b32 s57, s53, 1")
    a("s_and_b32 s58, s53, 1")
    a(f"s_xor_b32 s100, s52, {gx}")
    a("s_lshl_b32 s59, s100, 3")
    a("s_add_u32 s59, s59, s57")
    a("s_or_b32 s50, s2, s3")
    a("s_cmp_lg_u32 s50, 0")
    a("s_cbranch_scc1 L_no_nonce")
    a("s_or_b32 s22, s22, 1")
    a("v_mov_b32 v60, s22")
    a("v_mov_b32 v61, s23")
    a("v_lshlrev_b32 v62, 6, v2")
    a("v_cmp_gt_u32 vcc, 4, v2")
    a("s_and_saveexec_b64 s[48:49], vcc")
    a("buffer_store_dwordx2 v[60:61], v62, s[96:99], 0 offen sc0 sc1")
    a("s_mov_b64 exec, s[48:49]")
    a("L_no_nonce:")
    a("s_cmp_lg_u32 s3, 0")
    a("s_cbranch_scc1 L_no_tree")
    a("v_lshlrev_b32 v112, 2, v2")
    a("v_mov_b32 v113, 0")
    a("v_and_b32 v124, 7, v2")
    a("v_and_b32 v115, 8, v2")
    a("v_lshl_add_u32 v124, v115, 2, v124")
    a("v_lshl_add_u32 v124, v4, 3, v124")
    a("v_lshlrev_b32 v124, 1, v124")
    srd(a, 64, 4, 5, 32768)
    a("s_lshl_b32 s60, s59, 8")
    a("buffer_load_dword v116, v112, s[64:67], s60 offen")
    srd(a, 68, 10, 11, 4096)
    a("s_lshl_b32 s61, s100, 8")
    a("buffer_load_dword v117, v112, s[68:71], s61 offen")
    srd(a, 72, 12, 13, 4096)
    a("s_lshl_b32 s62, s58, 7")
    a("s_add_u32 s62, s62, s61")
    a("buffer_load_ushort v118, v124, s[72:75], s62 offen")
    srd(a, 76, 14, 15, 8)
    a("s_lshr_b32 s63, s100, 2")
    a("s_lshl_b32 s63, s63, 1")
    a("buffer_load_ushort v119, v113, s[76:79], s63 offen")
    a("L_no_tree:")
    if W0 > 32: issue(W0 - 32)
    SB = 24
    TB = 64
    def adds(n):
        t = TB + 16 * (n & 1)
        a(f"v_add_f32 v{SB+n}, v{t}, v{t+5}")
        a(f"v_add_f32 v{t+10}, v{t+10}, v{t+15}")
        a(f"v_add_f32 v{SB+n}, v{SB+n}, v{t+10}")
    for n in range(32):
        vm.wait(f"k{n}" if n > 0 else "q3")
        if n == 0: stamp(1)
        t = TB + 16 * (n & 1)
        for c in range(4):
            a(f"v_mfma_f32_16x16x32_bf16 v[{t+4*c}:{t+4*c+3}], a[{n*4}:{n*4+3}], v[{QB+4*c}:{QB+4*c+3}], 0")
        if issued[0] - (n + 1) < W: issue(1)
        else: a("s_nop 1")
        if n == 20:
            a("s_cmp_lg_u32 s3, 0")
            a("s_cbranch_scc1 L_no_nl")
            a("s_and_b32 s50, s2, 3")
            a("s_lshl_b32 s50, s50, 6")
            a("v_mov_b32 v113, 0")
            a("buffer_load_dwordx2 v[122:123], v113, s[96:99], s50 offen sc1")
            a("L_no_nl:")
            nonce_after = issued[0]
        if n >= 1: adds(n - 1)
    stamp(2)
    a("s_nop 4")
    adds(31)
    cnt = [0]
    def V(text):
        a(text); cnt[0] += 1
        if cnt[0] % vper == 0: issue(1)
    M = "v56"; T = "v57"
    V(f"v_max3_f32 {M}, v{SB}, v{SB+1}, v{SB+2}")
    r = 3
    while r < 32:
        if r + 1 < 32:
            V(f"v_max3_f32 {M}, {M}, v{SB+r}, v{SB+r+1}"); r += 2
        else:
            V(f"v_max_f32 {M}, {M}, v{SB+r}"); r += 1
    cross_rows(a, "v_max_f32", M, T)
    a("v_and_b32 v58, 7, v3")
    a("v_lshlrev_b32 v58, 4, v58")
    a("s_lshl_b32 s47, s3, 2")
    a("v_add_u32 v59, s47, v58")
    a("v_cmp_gt_u32 vcc, 8, v2")
    a("s_and_saveexec_b64 s[48:49], vcc")
    a(f"ds_write_b32 v59, {M} offset:{LDS_M}")
    a("s_mov_b64 exec, s[48:49]")
    a("s_cmp_lg_u32 s3, 0")
    a("s_cbranch_scc1 L_no_nw")
    assert issued[0] > nonce_after
    kind, idx = seq[nonce_after]
    vm.wait(f"{kind}{idx}")
    a("L_nonce_chk:")
    a("v_readfirstlane_b32 s50, v122")
    a("s_cmp_eq_u32 s50, 0")
    a("s_cbranch_scc1 L_nonce_slow")
    a("L_nonce_ok:")
    a("v_mov_b32 v59, 0")
    a(f"ds_write_b64 v59, v[122:123] offset:{LDS_N}")
    a("v_lshlrev_b32 v120, 16, v116")
    a("v_and_b32 v121, 0xffff0000, v116")
    a("v_lshlrev_b32 v126, 16, v117")
    a("v_and_b32 v127, 0xffff0000, v117")
    a("v_mul_f32 v120, v120, v126")
    a("v_fmac_f32 v120, v121, v127")
    wave_allreduce(a, "v_add_f32", "v120", "v121")
    a("v_lshlrev_b32 v119, 16, v119")
    a("v_sub_f32 v119, 1.0, v119")
    a(f"v_mul_f32 v119, {f2u(-1e9*LOG2E):#x}, v119")
    a("v_fma_f32 v120, v120, s44, v119")
    a("v_lshlrev_b32 v121, 16, v118")
    a("L_no_nw:")
    a("s_waitcnt lgkmcnt(0)")
    a("s_barrier")
    a(f"ds_read_b128 v[60:63], v58 offset:{LDS_M}")
    a("v_mov_b32 v59, 0")
    a(f"ds_read_b64 v[122:123], v59 offset:{LDS_N}")
    issue(1)
    a("s_waitcnt lgkmcnt(0)")
    a("v_max3_f32 v60, v60, v61, v62")
    a(f"v_max_f32 {M}, v60, v63")
    a(f"v_mul_f32 {M}, s44, {M}")
    a("v_mov_b32 v116, v122")
    a("v_lshrrev_b32 v117, 8, v122")
    a("v_lshrrev_b32 v118, 16, v122")
    a("v_lshrrev_b32 v119, 24, v122")
    for r in range(32):
        V(f"v_fma_f32 v{SB+r}, v{SB+r}, s44, -{M}")
    for r in range(32):
        V(f"v_exp_f32 v{SB+r}, v{SB+r}")
    a("s_nop 0")
    L = "v57"; T2 = "v58"
    V(f"v_add_f32 v60, v{SB}, v{SB+1}")
    V(f"v_add_f32 v61, v{SB+2}, v{SB+3}")
    for r in range(4, 32, 2):
        V(f"v_add_f32 v60, v60, v{SB+r}")
        V(f"v_add_f32 v61, v61, v{SB+r+1}")
    V(f"v_add_f32 {L}, v60, v61")
    cross_rows(a, "v_add_f32", L, T2)
    a("s_lshl_b32 s56, s52, 13")
    a("s_lshl_b32 s50, s53, 6")
    a("s_add_u32 s56, s56, s50")
    a("s_lshl_b32 s50, s3, 4")
    a("s_add_u32 s56, s56, s50")
    a(f"s_add_u32 s56, s56, {ML_BASE}")
    a("v_lshlrev_b32 v59, 10, v2")
    a(f"v_mov_b32 v60, {M}")
    a(f"v_bfi_b32 v61, 15, s34, {L}")
    a("v_mov_b32 v62, v122"); a("v_mov_b32 v63, v123")
    a("v_cmp_gt_u32 vcc, 8, v2")
    a("s_and_saveexec_b64 s[48:49], vcc")
    a(f"s_add_u32 s50, s56, {MLA_OFF}")
    vm.op("buffer_store_dwordx4 v[60:63], v59, s[36:39], s50 offen" + ostfl)
    vm.op("buffer_store_dwordx4 v[60:63], v59, s[36:39], s56 offen" + stfl)
    a("s_mov_b64 exec, s[48:49]")
    PL, PH = 64, 80
    for t in range(16):
        V(f"v_cvt_pk_bf16_f32 v{PL+t}, v{SB+2*t}, v{SB+2*t+1}")
    a("v_cmp_gt_u32 vcc, 8, v3")
    a("s_nop 1")
    a("v_cndmask_b32 v60, 0, -1, vcc")
    a("v_not_b32 v61, v60")
    for r in range(16):
        V(f"v_and_b32 v{PH+r}, v61, v{PL+r}")
    for r in range(16):
        V(f"v_and_b32 v{PL+r}, v60, v{PL+r}")
    issue(64)
    stamp(3)
    if stamps: a("s_mov_b32 s72, 0")
    a("s_mul_i32 s47, s3, %d" % WSTR)
    a("v_add_u32 v58, s47, v6")
    a("v_and_b32 v59, 3, v2")
    a(f"v_mul_u32_u24 v59, {ESTR}, v59")
    a("v_lshrrev_b32 v62, 3, v2")
    a("v_and_b32 v63, 4, v2")
    a("v_lshl_add_u32 v63, v63, 1, v62")
    a("s_lshl_b32 s47, s3, 4")
    a("v_add_u32 v63, s47, v63")
    a("v_lshl_add_u32 v59, v63, 4, v59")
    a("v_and_b32 v1, 7, v2")
    a("v_lshlrev_b32 v1, 4, v1")
    a("v_lshl_add_u32 v1, v62, 13, v1")
    a("s_lshl_b32 s55, s52, 4")
    a("s_lshr_b32 s50, s3, 1")
    a("s_add_u32 s55, s55, s50")
    a("s_lshl_b32 s55, s55, 4")
    a("s_add_u32 s55, s55, s53")
    a("s_lshl_b32 s55, s55, 8")
    a("s_and_b32 s50, s3, 1")
    a("s_lshl_b32 s50, s50, 7")
    a("s_add_u32 s55, s55, s50")
    a("s_lshl_b32 s60, s59, 10")
    a(f"s_add_u32 s60, s60, {ML_BASE}")
    a("s_lshl_b32 s61, s100, 4")
    a("s_add_u32 s61, s61, s53")
    a("s_lshl_b32 s61, s61, 12")
    a("s_lshl_b32 s63, s59, 8")
    a("s_lshl_b32 s50, s58, 7")
    a("s_add_u32 s63, s63, s50")
    a("s_mov_b32 s62, 0x0c0c0400")
    a("s_mov_b32 s56, 0x04000c0c")
    srd(a, 24, 16, 17, 32768)
    AC = 96
    TP = 8
    ops = [(ep, half) for ep in range(4) for half in range(2)]
    for u in range(3):
        vm.wait(f"v{8*u+7}")
        first = (u == 0)
        def perms(k):
            ep, half = ops[k]
            e = ep + 4 * half
            dw, hi = e >> 1, e & 1
            sel = "s46" if hi else "s45"
            tb = TP + 4 * (k & 3)
            for qq in range(4):
                r0 = VB + (8 * u + 2 * qq) * 4 + dw
                r1 = VB + (8 * u + 2 * qq + 1) * 4 + dw
                a(f"v_perm_b32 v{tb+qq}, v{r1}, v{r0}, {sel}")
        def mfma(k):
            ep, half = ops[k]
            tb = TP + 4 * (k & 3)
            pb = (PH if half else PL) + 4 * u
            c = "0" if (first and half == 0) else f"v[{AC+4*ep}:{AC+4*ep+3}]"
            a(f"v_mfma_f32_16x16x32_bf16 v[{AC+4*ep}:{AC+4*ep+3}], v[{tb}:{tb+3}], v[{pb}:{pb+3}], {c}")
        perms(0)
        perms(1)
        for k in range(8):
            mfma(k)
            if k + 2 < 8: perms(k + 2)
    u = 3
    TQ = 24
    def perm1(k, qq):
        ep, half = ops[k]
        e = ep + 4 * half
        dw, hi = e >> 1, e & 1
        sel = "s46" if hi else "s45"
        r0 = VB + (8 * u + 2 * qq) * 4 + dw
        r1 = VB + (8 * u + 2 * qq + 1) * 4 + dw
        a(f"v_perm_b32 v{TQ+4*k+qq}, v{r1}, v{r0}, {sel}")
    def mf(k):
        ep, half = ops[k]
        pb = (PH if half else PL) + 4 * u
        a(f"v_mfma_f32_16x16x32_bf16 v[{AC+4*ep}:{AC+4*ep+3}], v[{TQ+4*k}:{TQ+4*k+3}], v[{pb}:{pb+3}], v[{AC+4*ep}:{AC+4*ep+3}]")
    for qq in range(3):
        vm.wait(f"v{8*u+2*qq+1}")
        for k in range(8): perm1(k, qq)
    a("s_cmp_lg_u32 s3, 0")
    vm.wait(f"v{8*u+7}")
    stamp(4)
    a("s_cbranch_scc1 L_no_ml")
    a(f"s_add_u32 s50, s60, {MLA_OFF}")
    a("buffer_load_dwordx4 v[60:63], v6, s[36:39], s50 offen sc1")
    a("L_no_ml:")
    perm1(0, 3); perm1(1, 3); perm1(2, 3)
    mf(0); perm1(3, 3)
    mf(1); perm1(4, 3)
    mf(2); perm1(5, 3)
    mf(3); perm1(6, 3); perm1(7, 3)
    mf(4)
    mf(5)
    a("s_nop 1")
    a(f"ds_write_b128 v58, v[{AC}:{AC+3}] offset:{LDS_O}")
    mf(6)
    mf(7)
    a("s_nop 1")
    a(f"ds_write_b128 v58, v[{AC+4}:{AC+7}] offset:{LDS_O+ESTR}")
    a("s_nop 1")
    a(f"ds_write_b128 v58, v[{AC+8}:{AC+11}] offset:{LDS_O+2*ESTR}")
    a("s_nop 1")
    a(f"ds_write_b128 v58, v[{AC+12}:{AC+15}] offset:{LDS_O+3*ESTR}")
    a("s_waitcnt lgkmcnt(0)")
    a("s_barrier")
    for w in range(4):
        a(f"ds_read_b128 v[{64+4*w}:{64+4*w+3}], v59 offset:{LDS_O+w*WSTR}")
    a("s_waitcnt lgkmcnt(2)")
    for r in range(4): a(f"v_add_f32 v{64+r}, v{64+r}, v{68+r}")
    a("s_waitcnt lgkmcnt(0)")
    for r in range(4): a(f"v_add_f32 v{72+r}, v{72+r}, v{76+r}")
    for r in range(4): a(f"v_add_f32 v{112+r}, v{64+r}, v{72+r}")
    for r in range(4): a(f"v_bfi_b32 v{112+r}, s101, v{116+r}, v{112+r}")
    vm.op("buffer_store_dwordx4 v[112:115], v1, s[36:39], s55 offen" + ostfl)
    stamp(5)
    a("s_cmp_lg_u32 s3, 0")
    a("s_cbranch_scc1 L_wdone")
    for i in range(4):
        a(f"buffer_load_dwordx4 v[{24+4*i}:{24+4*i+3}], v6, s[36:39], s61 offen offset:{i*1024}{ldfl}")
    a("s_waitcnt vmcnt(5)")
    a("v_cmp_ne_u64 vcc, v[62:63], v[122:123]")
    a("s_cbranch_vccnz L_ml_late")
    a("v_and_b32 v14, 15, v61")
    a("v_cmp_ne_u32 vcc, s34, v14")
    if force_slow: a("s_branch L_ml_late")
    a("s_cbranch_vccnz L_ml_late")
    weights(a, "v60", "v61")
    a("L_local:")
    if stamps: a("s_memrealtime s[22:23]")
    if stamps: a("s_memrealtime s[32:33]")
    a("s_mov_b32 s51, 0")
    if nsets:
        bases = [24, 40, 128, 144][:nsets]
        def issue_set(b, masked):
            for i in range(4):
                if masked:
                    a(f"s_bitcmp1_b32 s64, {i}")
                    a("s_cselect_b64 exec, 1, -1")
                a(f"buffer_load_dwordx4 v[{b+4*i}:{b+4*i+3}], v6, s[36:39], s61 offen offset:{i*1024}{ldfl}")
            if masked: a("s_mov_b64 exec, -1")
        lab = [0]
        def proc(b):
            for i in range(4):
                lab[0] += 1
                n = f"L_n{lab[0]}"
                x = b + 4 * i
                a(f"s_bitcmp1_b32 s64, {i}")
                a(f"s_cbranch_scc1 {n}")
                a(f"v_perm_b32 v14, v{x+1}, v{x}, s62")
                a(f"v_perm_b32 v15, v{x+3}, v{x+2}, s56")
                a("v_or_b32 v14, v14, v15")
                a("v_cmp_ne_u32 vcc, v14, v122")
                a(f"s_cbranch_vccnz {n}")
                for r in range(4): a(f"v_fmac_f32 v{8+r}, v{x+r}, v{80+i}")
                a(f"s_bitset1_b32 s64, {i}")
                a(f"{n}:")
            a("s_cmp_eq_u32 s64, 15")
            a("s_cbranch_scc1 L_store")
        for b in bases[1:]: issue_set(b, False)
        a("s_mov_b32 s64, 0")
        for r in range(4): a(f"v_mov_b32 v{8+r}, 0")
        a("s_waitcnt lgkmcnt(0)")
        a("L_sweep:")
        for b in bases:
            a(f"s_waitcnt vmcnt({4*(nsets-1)})")
            proc(b)
            issue_set(b, True)
        a("s_add_u32 s51, s51, 1")
        a(f"s_cmp_lt_u32 s51, {SPIN}")
        a("s_cbranch_scc1 L_sweep")
    else:
        a("L_sweep:")
        a("s_waitcnt vmcnt(0) lgkmcnt(0)")
        for i in range(4):
            b = 24 + 4 * i
            a(f"v_perm_b32 v{40+2*i}, v{b+1}, v{b}, s62")
            a(f"v_perm_b32 v{41+2*i}, v{b+3}, v{b+2}, s56")
        for r in range(4): a(f"v_mul_f32 v{8+r}, v{24+r}, v80")
        for i in range(4):
            a(f"v_or_b32 v{40+2*i}, v{40+2*i}, v{41+2*i}")
        for i in range(1, 4):
            for r in range(4): a(f"v_fmac_f32 v{8+r}, v{24+4*i+r}, v{80+i}")
        for i in range(4):
            a(f"v_cmp_ne_u32 s[{64+2*i}:{65+2*i}], v{40+2*i}, v122")
        a("s_or_b64 s[48:49], s[64:65], s[66:67]")
        a("s_or_b64 s[48:49], s[48:49], s[68:69]")
        a("s_or_b64 s[48:49], s[48:49], s[70:71]")
        a("s_cbranch_scc0 L_store")
        a("s_add_u32 s51, s51, 1")
        a(f"s_cmp_ge_u32 s51, {SPIN}")
        a("s_cbranch_scc1 L_store")
        if sleep: a(f"s_sleep {sleep}")
        for i in range(4):
            if selre:
                a(f"s_cmp_eq_u64 s[{64+2*i}:{65+2*i}], 0")
                a(f"s_cbranch_scc1 L_skip{i}")
            a(f"buffer_load_dwordx4 v[{24+4*i}:{24+4*i+3}], v6, s[36:39], s61 offen offset:{i*1024}{ldfl}")
            if selre: a(f"L_skip{i}:")
        a("s_branch L_sweep")
    a("L_store:")
    stamp(6)
    if nsets: a("s_nop 0")
    a("v_permlane32_swap_b32 v8, v10")
    a("v_permlane32_swap_b32 v9, v11")
    a("s_nop 1")
    a("v_add_f32 v8, v8, v10")
    a("v_add_f32 v9, v9, v11")
    a("s_nop 1")
    a("v_permlane16_swap_b32 v8, v9")
    a("s_nop 1")
    a("v_add_f32 v8, v8, v9")
    a("v_add_f32 v8, v8, v121")
    a("v_cvt_pk_bf16_f32 v8, v8, v8")
    a("buffer_store_short v8, v124, s[24:27], s63 offen" + outfl)
    a("s_branch L_fin")
    a("L_ml_late:")
    a("s_mov_b32 s51, 0")
    a("L_ml_loop:")
    a("buffer_load_dwordx4 v[60:63], v6, s[36:39], s60 offen sc1")
    a("s_waitcnt vmcnt(0)")
    a("v_cmp_ne_u64 vcc, v[62:63], v[122:123]")
    a("s_cbranch_vccz L_ml_ok")
    a("s_add_u32 s51, s51, 1")
    a(f"s_cmp_lt_u32 s51, {SPIN}")
    a("s_cbranch_scc1 L_ml_loop")
    a("L_ml_ok:")
    if stamps: a("s_add_u32 s72, s51, 1")
    a("v_and_b32 v14, 15, v61")
    a("v_cmp_ne_u32 vcc, s34, v14")
    if not force_slow: a("s_cbranch_vccz L_ml_w")
    a("s_barrier")
    a("s_waitcnt vmcnt(0)")
    a("buffer_wbl2 sc1")
    a("s_waitcnt vmcnt(0)")
    a("L_ml_w:")
    weights(a, "v60", "v61")
    a("s_branch L_local")
    a("L_nonce_slow:")
    a("s_mov_b32 s51, 0")
    a("s_and_b32 s47, s2, 3")
    a("s_lshl_b32 s47, s47, 6")
    a("v_mov_b32 v113, 0")
    a("L_nonce_loop:")
    a("buffer_load_dwordx2 v[122:123], v113, s[96:99], s47 offen sc1")
    a("s_waitcnt vmcnt(0)")
    a("v_readfirstlane_b32 s50, v122")
    a("s_cmp_lg_u32 s50, 0")
    a("s_cbranch_scc1 L_nonce_ok")
    a("s_add_u32 s51, s51, 1")
    a(f"s_cmp_lt_u32 s51, {SPIN}")
    a("s_cbranch_scc1 L_nonce_loop")
    a("s_branch L_nonce_ok")
    a("L_wdone:")
    a("s_waitcnt vmcnt(0)")
    a("L_fin:")
    if stamps:
        stamp(7)
        a("s_waitcnt vmcnt(0) lgkmcnt(0)")
        a("s_lshl_b32 s50, s2, 2")
        a("s_add_u32 s50, s50, s3")
        a("s_lshl_b32 s50, s50, 6")
        a(f"s_add_u32 s50, s50, {STAMP_BASE}")
        for j in range(8):
            a(f"v_mov_b32 v{8+j}, s{80+2*j}")
        for j, r in enumerate((22, 32, 32, 51, 72, 35, 35, 35)):
            a(f"v_mov_b32 v{16+j}, s{r}")
        a("s_getreg_b32 s35, hwreg(HW_REG_XCC_ID)")
        a("v_mov_b32 v23, s35")
        a("v_mov_b32 v1, 0")
        a("v_cmp_eq_u32 vcc, 0, v2")
        a("s_and_saveexec_b64 s[48:49], vcc")
        for j in range(4):
            a(f"buffer_store_dwordx4 v[{8+4*j}:{8+4*j+3}], v1, s[36:39], s50 offen offset:{16*j}")
    a("L_end:")
    a("s_endpgm")
    a('.section .rodata,"a"')
    a(".p2align 6")
    a(descriptor(KNAME, 384, 256))
    return a.text()

if __name__ == "__main__":
    import argparse
    ap = argparse.ArgumentParser()
    ap.add_argument("-o", default="g.s")
    ap.add_argument("--fl", default="nt")
    ap.add_argument("-W", type=int, default=20)
    ap.add_argument("--W0", type=int, default=32)
    ap.add_argument("--stamps", action="store_true")
    ap.add_argument("--noxcd", action="store_true")
    ap.add_argument("--vper", type=int, default=10)
    ap.add_argument("--gx", type=int, default=0)
    ap.add_argument("--ostfl", default="")
    ap.add_argument("--mlpos", type=int, default=0)
    ap.add_argument("--force_slow", action="store_true")
    ap.add_argument("--stfl", default="sc1")
    ap.add_argument("--ldfl", default="sc1")
    ap.add_argument("--outfl", default="")
    ap.add_argument("--nosel", action="store_true")
    ap.add_argument("--sleep", type=int, default=0)
    ap.add_argument("--nsets", type=int, default=0)
    x = ap.parse_args()
    sp = lambda s: (" " + s) if s else ""
    open(x.o, "w").write(gen(fl=sp(x.fl), W=x.W, W0=x.W0, stamps=x.stamps, xcd=not x.noxcd, vper=x.vper, stfl=sp(x.stfl), ldfl=sp(x.ldfl), gx=x.gx, outfl=sp(x.outfl), selre=not x.nosel, sleep=x.sleep, nsets=x.nsets, ostfl=sp(x.ostfl), force_slow=x.force_slow, mlpos=x.mlpos))
```

```python
import sys, math, struct
sys.path.insert(0, "gen")
from common import *

def f2u(x): return struct.unpack("<I", struct.pack("<f", x))[0]
LOG2E = 1.4426950408889634
SCALE = 128 ** -0.5
C_SL = SCALE * LOG2E

O_BASE = 0
ML_BASE = 1 << 20
MLA_OFF = 1 << 17
STAMP_BASE = 4 << 20
LDS_M = 0
LDS_N = 128
LDS_O = 256
ESTR = 1088
WSTR = 4 * ESTR
LDS_SIZE = LDS_O + 4 * WSTR
SPIN = 1 << 16

def cross_rows(a, op, v, t):
    a(f"v_mov_b32 {t}, {v}")
    a("s_nop 1")
    a(f"v_permlane16_swap_b32 {t}, {v}")
    a("s_nop 1")
    a(f"{op} {v}, {v}, {t}")
    a(f"v_mov_b32 {t}, {v}")
    a("s_nop 1")
    a(f"v_permlane32_swap_b32 {t}, {v}")
    a("s_nop 1")
    a(f"{op} {v}, {v}, {t}")

def wave_allreduce(a, op, v, t):
    for ctl in ("quad_perm:[1,0,3,2]", "quad_perm:[2,3,0,1]", "row_half_mirror", "row_mirror"):
        a("s_nop 1")
        a(f"{op}_dpp {v}, {v}, {v} {ctl} row_mask:0xf bank_mask:0xf")
    cross_rows(a, op, v, t)

class VM:
    def __init__(self, a): self.a = a; self.n = 0; self.tag = {}
    def op(self, text, tag=None):
        self.a(text); self.n += 1
        if tag: self.tag[tag] = self.n
    def wait(self, tag):
        left = self.n - self.tag[tag]
        assert left <= 63, left
        self.a(f"s_waitcnt vmcnt({left})")

def srd(a, base, lo, hi, size):
    a(f"s_mov_b32 s{base}, s{lo}")
    a(f"s_mov_b32 s{base+1}, s{hi}")
    a(f"s_mov_b32 s{base+2}, {size}")
    a(f"s_mov_b32 s{base+3}, 0x20000")

def weights(a, m, l, hook=None, pos=-1):
    if pos == 0: hook()
    a(f"v_max_f32 v8, {m}, v120")
    wave_allreduce(a, "v_max_f32", "v8", "v9")
    if pos == 1: hook()
    a(f"v_sub_f32 v10, {m}, v8")
    a("v_sub_f32 v11, v120, v8")
    a("v_exp_f32 v10, v10")
    a("v_exp_f32 v11, v11")
    a("v_lshlrev_b32 v13, 4, v4")
    a(f"v_mul_f32 v12, v10, {l}")
    wave_allreduce(a, "v_add_f32", "v12", "v9")
    if pos == 2: hook()
    a("v_add_f32 v12, v12, v11")
    a("v_rcp_f32 v12, v12")
    a("s_nop 0")
    a("v_mul_f32 v10, v10, v12")
    a("v_mul_f32 v11, v11, v12")
    a("v_mul_f32 v121, v11, v121")
    for i in range(4):
        a(f"ds_bpermute_b32 v{80+i}, v13, v10 offset:{64*i}")

def gen(fl=" nt", W=20, W0=32, stamps=False, xcd=True, vper=10, stfl=" sc1", ldfl=" sc1", gx=0, outfl="", selre=True, sleep=0, nsets=0, ostfl="", force_slow=False, mlpos=0, swpos=-1):
    a = Asm()
    a(HEADER.rstrip("\n"))
    a(f"; @launch grid=(256,1,1) block=(256,1,1) lds={LDS_SIZE}")
    a('.amdgcn_target "amdgcn-amd-amdhsa--gfx950"')
    a(".text")
    kernel_begin(a, KNAME)
    vm = VM(a)
    def stamp(i):
        if stamps: a(f"s_memrealtime s[{80+2*i}:{81+2*i}]")
    stamp(0)
    a("s_cmp_ge_u32 s2, 256")
    a("s_cbranch_scc1 L_end")
    a("s_load_dwordx16 s[4:19], s[0:1], 0")
    a("v_lshrrev_b32 v1, 6, v0")
    a("v_and_b32 v2, 63, v0")
    a("v_readfirstlane_b32 s3, v1")
    a("v_and_b32 v3, 15, v2")
    a("v_lshrrev_b32 v4, 4, v2")
    a("v_lshrrev_b32 v5, 2, v3")
    a("v_lshlrev_b32 v5, 8, v5")
    a("v_and_b32 v6, 3, v3")
    a("v_lshl_add_u32 v5, v6, 4, v5")
    a("v_lshl_add_u32 v5, v4, 6, v5")
    a("v_lshlrev_b32 v6, 4, v2")
    a("v_and_b32 v7, 7, v3")
    a("v_lshlrev_b32 v7, 8, v7")
    a("v_lshl_add_u32 v7, v4, 6, v7")
    a("v_mov_b32 v124, 0")
    if xcd:
        a("s_and_b32 s50, s2, 7")
        a("s_lshl_b32 s50, s50, 5")
        a("s_lshr_b32 s51, s2, 3")
        a("s_add_u32 s34, s50, s51")
    else:
        a("s_mov_b32 s34, s2")
    a("s_lshr_b32 s52, s34, 4")
    a("s_and_b32 s53, s34, 15")
    a("s_lshl_b32 s32, s34, 17")
    a("s_lshl_b32 s33, s3, 10")
    a("s_mov_b32 s35, s33")
    a("s_lshl_b32 s54, s52, 11")
    a("s_mov_b32 s26, 0x20000")
    a("s_mov_b32 s27, 0x20000")
    a("s_mov_b32 s42, 2048")
    a("s_mov_b32 s43, 0x20000")
    a("s_mov_b32 s30, 0x20000")
    a("s_mov_b32 s31, 0x20000")
    a("s_waitcnt lgkmcnt(0)")
    a("s_add_u32 s24, s6, s32")
    a("s_addc_u32 s25, s7, 0")
    QB = 8
    VB = 128
    seq = [("k", i) for i in range(32)] + [("v", i) for i in range(32)]
    issued = [0]
    limit = [64]
    def issue(n=1):
        for _ in range(n):
            if issued[0] >= min(len(seq), limit[0]): return
            kind, idx = seq[issued[0]]
            if kind == "k":
                vm.op(f"buffer_load_dwordx4 a[{idx*4}:{idx*4+3}], v5, s[24:27], s35 offen{fl}", f"k{idx}")
                if idx < 31: a("s_add_u32 s35, s35, 4096")
            else:
                vm.op(f"buffer_load_dwordx4 v[{VB+idx*4}:{VB+idx*4+3}], v6, s[28:31], s33 offen{fl}", f"v{idx}")
                if idx < 31: a("s_add_u32 s33, s33, 4096")
            issued[0] += 1
    issue(1)
    a("s_add_u32 s40, s4, s54")
    a("s_addc_u32 s41, s5, 0")
    for c in range(4):
        vm.op(f"buffer_load_dwordx4 v[{QB+4*c}:{QB+4*c+3}], v7, s[40:43], 0 offen offset:{c*16}", f"q{c}")
    a("s_load_dwordx2 s[20:21], s[0:1], 64")
    a("s_memrealtime s[22:23]")
    a("s_add_u32 s28, s8, s32")
    a("s_addc_u32 s29, s9, 0")
    issue(min(W0, 32) - 1)
    a("s_waitcnt lgkmcnt(0)")
    srd(a, 36, 20, 21, "0x10000000")
    srd(a, 96, 18, 19, 256)
    a(f"s_mov_b32 s44, {f2u(C_SL):#x}")
    a("s_mov_b32 s45, 0x05040100")
    a("s_mov_b32 s46, 0x07060302")
    a("s_movk_i32 s101, 0xff")
    a("s_getreg_b32 s34, hwreg(HW_REG_XCC_ID, 0, 4)")
    a("s_lshr_b32 s57, s53, 1")
    a("s_and_b32 s58, s53, 1")
    a(f"s_xor_b32 s100, s52, {gx}")
    a("s_lshl_b32 s59, s100, 3")
    a("s_add_u32 s59, s59, s57")
    a("s_or_b32 s50, s2, s3")
    a("s_cmp_lg_u32 s50, 0")
    a("s_cbranch_scc1 L_no_nonce")
    a("s_or_b32 s22, s22, 1")
    a("v_mov_b32 v60, s22")
    a("v_mov_b32 v61, s23")
    a("v_lshlrev_b32 v62, 6, v2")
    a("v_cmp_gt_u32 vcc, 4, v2")
    a("s_and_saveexec_b64 s[48:49], vcc")
    a("buffer_store_dwordx2 v[60:61], v62, s[96:99], 0 offen sc0 sc1")
    a("s_mov_b64 exec, s[48:49]")
    a("L_no_nonce:")
    a("s_cmp_lg_u32 s3, 0")
    a("s_cbranch_scc1 L_no_tree")
    a("v_lshlrev_b32 v112, 2, v2")
    a("v_mov_b32 v113, 0")
    a("v_and_b32 v124, 7, v2")
    a("v_and_b32 v115, 8, v2")
    a("v_lshl_add_u32 v124, v115, 2, v124")
    a("v_lshl_add_u32 v124, v4, 3, v124")
    a("v_lshlrev_b32 v124, 1, v124")
    srd(a, 64, 4, 5, 32768)
    a("s_lshl_b32 s60, s59, 8")
    a("buffer_load_dword v116, v112, s[64:67], s60 offen")
    srd(a, 68, 10, 11, 4096)
    a("s_lshl_b32 s61, s100, 8")
    a("buffer_load_dword v117, v112, s[68:71], s61 offen")
    srd(a, 72, 12, 13, 4096)
    a("s_lshl_b32 s62, s58, 7")
    a("s_add_u32 s62, s62, s61")
    a("buffer_load_ushort v118, v124, s[72:75], s62 offen")
    srd(a, 76, 14, 15, 8)
    a("s_lshr_b32 s63, s100, 2")
    a("s_lshl_b32 s63, s63, 1")
    a("buffer_load_ushort v119, v113, s[76:79], s63 offen")
    a("L_no_tree:")
    if W0 > 32: issue(W0 - 32)
    SB = 24
    TB = 64
    def adds(n):
        t = TB + 16 * (n & 1)
        a(f"v_add_f32 v{SB+n}, v{t}, v{t+5}")
        a(f"v_add_f32 v{t+10}, v{t+10}, v{t+15}")
        a(f"v_add_f32 v{SB+n}, v{SB+n}, v{t+10}")
    for n in range(32):
        vm.wait(f"k{n}" if n > 0 else "q3")
        if n == 0: stamp(1)
        t = TB + 16 * (n & 1)
        for c in range(4):
            a(f"v_mfma_f32_16x16x32_bf16 v[{t+4*c}:{t+4*c+3}], a[{n*4}:{n*4+3}], v[{QB+4*c}:{QB+4*c+3}], 0")
        if issued[0] - (n + 1) < W: issue(1)
        else: a("s_nop 1")
        if n == 20:
            a("s_cmp_lg_u32 s3, 0")
            a("s_cbranch_scc1 L_no_nl")
            a("s_and_b32 s50, s2, 3")
            a("s_lshl_b32 s50, s50, 6")
            a("v_mov_b32 v113, 0")
            a("buffer_load_dwordx2 v[122:123], v113, s[96:99], s50 offen sc1")
            a("L_no_nl:")
            nonce_after = issued[0]
        if n >= 1: adds(n - 1)
    stamp(2)
    a("s_nop 4")
    adds(31)
    cnt = [0]
    def V(text):
        a(text); cnt[0] += 1
        if cnt[0] % vper == 0: issue(1)
    M = "v56"; T = "v57"
    V(f"v_max3_f32 {M}, v{SB}, v{SB+1}, v{SB+2}")
    r = 3
    while r < 32:
        if r + 1 < 32:
            V(f"v_max3_f32 {M}, {M}, v{SB+r}, v{SB+r+1}"); r += 2
        else:
            V(f"v_max_f32 {M}, {M}, v{SB+r}"); r += 1
    cross_rows(a, "v_max_f32", M, T)
    a("v_and_b32 v58, 7, v3")
    a("v_lshlrev_b32 v58, 4, v58")
    a("s_lshl_b32 s47, s3, 2")
    a("v_add_u32 v59, s47, v58")
    a("v_cmp_gt_u32 vcc, 8, v2")
    a("s_and_saveexec_b64 s[48:49], vcc")
    a(f"ds_write_b32 v59, {M} offset:{LDS_M}")
    a("s_mov_b64 exec, s[48:49]")
    a("s_cmp_lg_u32 s3, 0")
    a("s_cbranch_scc1 L_no_nw")
    assert issued[0] > nonce_after
    kind, idx = seq[nonce_after]
    vm.wait(f"{kind}{idx}")
    a("L_nonce_chk:")
    a("v_readfirstlane_b32 s50, v122")
    a("s_cmp_eq_u32 s50, 0")
    a("s_cbranch_scc1 L_nonce_slow")
    a("L_nonce_ok:")
    a("v_mov_b32 v59, 0")
    a(f"ds_write_b64 v59, v[122:123] offset:{LDS_N}")
    a("v_lshlrev_b32 v120, 16, v116")
    a("v_and_b32 v121, 0xffff0000, v116")
    a("v_lshlrev_b32 v126, 16, v117")
    a("v_and_b32 v127, 0xffff0000, v117")
    a("v_mul_f32 v120, v120, v126")
    a("v_fmac_f32 v120, v121, v127")
    wave_allreduce(a, "v_add_f32", "v120", "v121")
    a("v_lshlrev_b32 v119, 16, v119")
    a("v_sub_f32 v119, 1.0, v119")
    a(f"v_mul_f32 v119, {f2u(-1e9*LOG2E):#x}, v119")
    a("v_fma_f32 v120, v120, s44, v119")
    a("v_lshlrev_b32 v121, 16, v118")
    a("L_no_nw:")
    a("s_waitcnt lgkmcnt(0)")
    a("s_barrier")
    a(f"ds_read_b128 v[60:63], v58 offset:{LDS_M}")
    a("v_mov_b32 v59, 0")
    a(f"ds_read_b64 v[122:123], v59 offset:{LDS_N}")
    issue(1)
    a("s_waitcnt lgkmcnt(0)")
    a("v_max3_f32 v60, v60, v61, v62")
    a(f"v_max_f32 {M}, v60, v63")
    a(f"v_mul_f32 {M}, s44, {M}")
    a("v_mov_b32 v116, v122")
    a("v_lshrrev_b32 v117, 8, v122")
    a("v_lshrrev_b32 v118, 16, v122")
    a("v_lshrrev_b32 v119, 24, v122")
    for r in range(32):
        V(f"v_fma_f32 v{SB+r}, v{SB+r}, s44, -{M}")
    for r in range(32):
        V(f"v_exp_f32 v{SB+r}, v{SB+r}")
    a("s_nop 0")
    L = "v57"; T2 = "v58"
    V(f"v_add_f32 v60, v{SB}, v{SB+1}")
    V(f"v_add_f32 v61, v{SB+2}, v{SB+3}")
    for r in range(4, 32, 2):
        V(f"v_add_f32 v60, v60, v{SB+r}")
        V(f"v_add_f32 v61, v61, v{SB+r+1}")
    V(f"v_add_f32 {L}, v60, v61")
    cross_rows(a, "v_add_f32", L, T2)
    a("s_lshl_b32 s56, s52, 13")
    a("s_lshl_b32 s50, s53, 6")
    a("s_add_u32 s56, s56, s50")
    a("s_lshl_b32 s50, s3, 4")
    a("s_add_u32 s56, s56, s50")
    a(f"s_add_u32 s56, s56, {ML_BASE}")
    a("v_lshlrev_b32 v59, 10, v2")
    a(f"v_mov_b32 v60, {M}")
    a(f"v_bfi_b32 v61, 15, s34, {L}")
    a("v_mov_b32 v62, v122"); a("v_mov_b32 v63, v123")
    a("v_cmp_gt_u32 vcc, 8, v2")
    a("s_and_saveexec_b64 s[48:49], vcc")
    a(f"s_add_u32 s50, s56, {MLA_OFF}")
    vm.op("buffer_store_dwordx4 v[60:63], v59, s[36:39], s50 offen" + ostfl)
    vm.op("buffer_store_dwordx4 v[60:63], v59, s[36:39], s56 offen" + stfl)
    a("s_mov_b64 exec, s[48:49]")
    PL, PH = 64, 80
    for t in range(16):
        V(f"v_cvt_pk_bf16_f32 v{PL+t}, v{SB+2*t}, v{SB+2*t+1}")
    a("v_cmp_gt_u32 vcc, 8, v3")
    a("s_nop 1")
    a("v_cndmask_b32 v60, 0, -1, vcc")
    a("v_not_b32 v61, v60")
    for r in range(16):
        V(f"v_and_b32 v{PH+r}, v61, v{PL+r}")
    for r in range(16):
        V(f"v_and_b32 v{PL+r}, v60, v{PL+r}")
    issue(64)
    stamp(3)
    if stamps: a("s_mov_b32 s72, 0")
    a("s_mul_i32 s47, s3, %d" % WSTR)
    a("v_add_u32 v58, s47, v6")
    a("v_and_b32 v59, 3, v2")
    a(f"v_mul_u32_u24 v59, {ESTR}, v59")
    a("v_lshrrev_b32 v62, 3, v2")
    a("v_and_b32 v63, 4, v2")
    a("v_lshl_add_u32 v63, v63, 1, v62")
    a("s_lshl_b32 s47, s3, 4")
    a("v_add_u32 v63, s47, v63")
    a("v_lshl_add_u32 v59, v63, 4, v59")
    a("v_and_b32 v1, 7, v2")
    a("v_lshlrev_b32 v1, 4, v1")
    a("v_lshl_add_u32 v1, v62, 13, v1")
    a("s_lshl_b32 s55, s52, 4")
    a("s_lshr_b32 s50, s3, 1")
    a("s_add_u32 s55, s55, s50")
    a("s_lshl_b32 s55, s55, 4")
    a("s_add_u32 s55, s55, s53")
    a("s_lshl_b32 s55, s55, 8")
    a("s_and_b32 s50, s3, 1")
    a("s_lshl_b32 s50, s50, 7")
    a("s_add_u32 s55, s55, s50")
    a("s_lshl_b32 s60, s59, 10")
    a(f"s_add_u32 s60, s60, {ML_BASE}")
    a("s_lshl_b32 s61, s100, 4")
    a("s_add_u32 s61, s61, s53")
    a("s_lshl_b32 s61, s61, 12")
    a("s_lshl_b32 s63, s59, 8")
    a("s_lshl_b32 s50, s58, 7")
    a("s_add_u32 s63, s63, s50")
    a("s_mov_b32 s62, 0x0c0c0400")
    a("s_mov_b32 s56, 0x04000c0c")
    srd(a, 24, 16, 17, 32768)
    AC = 96
    TP = 8
    ops = [(ep, half) for ep in range(4) for half in range(2)]
    for u in range(3):
        vm.wait(f"v{8*u+7}")
        first = (u == 0)
        def perms(k):
            ep, half = ops[k]
            e = ep + 4 * half
            dw, hi = e >> 1, e & 1
            sel = "s46" if hi else "s45"
            tb = TP + 4 * (k & 3)
            for qq in range(4):
                r0 = VB + (8 * u + 2 * qq) * 4 + dw
                r1 = VB + (8 * u + 2 * qq + 1) * 4 + dw
                a(f"v_perm_b32 v{tb+qq}, v{r1}, v{r0}, {sel}")
        def mfma(k):
            ep, half = ops[k]
            tb = TP + 4 * (k & 3)
            pb = (PH if half else PL) + 4 * u
            c = "0" if (first and half == 0) else f"v[{AC+4*ep}:{AC+4*ep+3}]"
            a(f"v_mfma_f32_16x16x32_bf16 v[{AC+4*ep}:{AC+4*ep+3}], v[{tb}:{tb+3}], v[{pb}:{pb+3}], {c}")
        perms(0)
        perms(1)
        for k in range(8):
            mfma(k)
            if k + 2 < 8: perms(k + 2)
            if k == 6: a("s_nop 0")
    u = 3
    TQ = 24
    def perm1(k, qq):
        ep, half = ops[k]
        e = ep + 4 * half
        dw, hi = e >> 1, e & 1
        sel = "s46" if hi else "s45"
        r0 = VB + (8 * u + 2 * qq) * 4 + dw
        r1 = VB + (8 * u + 2 * qq + 1) * 4 + dw
        a(f"v_perm_b32 v{TQ+4*k+qq}, v{r1}, v{r0}, {sel}")
    def mf(k):
        ep, half = ops[k]
        pb = (PH if half else PL) + 4 * u
        a(f"v_mfma_f32_16x16x32_bf16 v[{AC+4*ep}:{AC+4*ep+3}], v[{TQ+4*k}:{TQ+4*k+3}], v[{pb}:{pb+3}], v[{AC+4*ep}:{AC+4*ep+3}]")
    for qq in range(3):
        vm.wait(f"v{8*u+2*qq+1}")
        for k in range(8): perm1(k, qq)
    a("s_cmp_lg_u32 s3, 0")
    vm.wait(f"v{8*u+7}")
    stamp(4)
    a("s_cbranch_scc1 L_no_ml")
    a(f"s_add_u32 s50, s60, {MLA_OFF}")
    a("buffer_load_dwordx4 v[60:63], v6, s[36:39], s50 offen sc1")
    a("L_no_ml:")
    perm1(0, 3); perm1(1, 3); perm1(2, 3)
    mf(0); perm1(3, 3)
    mf(1); perm1(4, 3)
    mf(2); perm1(5, 3)
    mf(3); perm1(6, 3); perm1(7, 3)
    mf(4)
    mf(5)
    a("s_nop 1")
    a(f"ds_write_b128 v58, v[{AC}:{AC+3}] offset:{LDS_O}")
    mf(6)
    mf(7)
    a("s_nop 1")
    a(f"ds_write_b128 v58, v[{AC+4}:{AC+7}] offset:{LDS_O+ESTR}")
    a("s_nop 1")
    a(f"ds_write_b128 v58, v[{AC+8}:{AC+11}] offset:{LDS_O+2*ESTR}")
    a("s_nop 1")
    a(f"ds_write_b128 v58, v[{AC+12}:{AC+15}] offset:{LDS_O+3*ESTR}")
    a("s_waitcnt lgkmcnt(0)")
    a("s_barrier")
    for w in range(4):
        a(f"ds_read_b128 v[{64+4*w}:{64+4*w+3}], v59 offset:{LDS_O+w*WSTR}")
    a("s_waitcnt lgkmcnt(2)")
    for r in range(4): a(f"v_add_f32 v{64+r}, v{64+r}, v{68+r}")
    a("s_waitcnt lgkmcnt(0)")
    for r in range(4): a(f"v_add_f32 v{72+r}, v{72+r}, v{76+r}")
    for r in range(4): a(f"v_add_f32 v{112+r}, v{64+r}, v{72+r}")
    for r in range(4): a(f"v_bfi_b32 v{112+r}, s101, v{116+r}, v{112+r}")
    vm.op("buffer_store_dwordx4 v[112:115], v1, s[36:39], s55 offen" + ostfl)
    stamp(5)
    a("s_cmp_lg_u32 s3, 0")
    a("s_cbranch_scc1 L_wdone")
    def first_sweep():
        for i in range(4):
            a(f"buffer_load_dwordx4 v[{24+4*i}:{24+4*i+3}], v6, s[36:39], s61 offen offset:{i*1024}{ldfl}")
    if swpos < 0:
        first_sweep()
        a("s_waitcnt vmcnt(5)")
    else:
        a("s_waitcnt vmcnt(1)")
    a("v_cmp_ne_u64 vcc, v[62:63], v[122:123]")
    a("s_cbranch_vccnz L_ml_late")
    a("v_and_b32 v14, 15, v61")
    a("v_cmp_ne_u32 vcc, s34, v14")
    if force_slow: a("s_branch L_ml_late")
    a("s_cbranch_vccnz L_ml_late")
    weights(a, "v60", "v61", first_sweep, swpos)
    a("L_local:")
    if stamps: a("s_memrealtime s[22:23]")
    if stamps: a("s_memrealtime s[32:33]")
    a("s_mov_b32 s51, 0")
    if nsets < 0:
        bases = [24, 40, 128][:-nsets]
        def sweep(b):
            for i in range(4):
                a(f"buffer_load_dwordx4 v[{b+4*i}:{b+4*i+3}], v6, s[36:39], s61 offen offset:{i*1024}{ldfl}")
        def check(b):
            for i in range(4):
                x = b + 4 * i
                a(f"v_perm_b32 v{16+2*i}, v{x+1}, v{x}, s62")
                a(f"v_perm_b32 v{17+2*i}, v{x+3}, v{x+2}, s56")
            for r in range(4): a(f"v_mul_f32 v{8+r}, v{b+r}, v80")
            for i in range(4): a(f"v_or_b32 v{16+2*i}, v{16+2*i}, v{17+2*i}")
            for i in range(1, 4):
                for r in range(4): a(f"v_fmac_f32 v{8+r}, v{b+4*i+r}, v{80+i}")
            a("v_xor_b32 v16, v16, v122")
            a("v_xor_b32 v18, v18, v122")
            a("v_xor_b32 v20, v20, v122")
            a("v_xor_b32 v22, v22, v122")
            a("v_or3_b32 v16, v16, v18, v20")
            a("v_or_b32 v16, v16, v22")
            a("v_cmp_ne_u32 vcc, 0, v16")
            a("s_cbranch_vccz L_store")
        for b in bases[1:]: sweep(b)
        a("s_waitcnt lgkmcnt(0)")
        a("L_sweep:")
        for b in bases:
            a(f"s_waitcnt vmcnt({4*(len(bases)-1)})")
            check(b)
            sweep(b)
        a("s_add_u32 s51, s51, 1")
        a(f"s_cmp_lt_u32 s51, {SPIN}")
        a("s_cbranch_scc1 L_sweep")
    elif nsets:
        bases = [24, 40, 128, 144][:nsets]
        def issue_set(b, masked):
            for i in range(4):
                if masked:
                    a(f"s_bitcmp1_b32 s64, {i}")
                    a("s_cselect_b64 exec, 1, -1")
                a(f"buffer_load_dwordx4 v[{b+4*i}:{b+4*i+3}], v6, s[36:39], s61 offen offset:{i*1024}{ldfl}")
            if masked: a("s_mov_b64 exec, -1")
        lab = [0]
        def proc(b):
            for i in range(4):
                lab[0] += 1
                n = f"L_n{lab[0]}"
                x = b + 4 * i
                a(f"s_bitcmp1_b32 s64, {i}")
                a(f"s_cbranch_scc1 {n}")
                a(f"v_perm_b32 v14, v{x+1}, v{x}, s62")
                a(f"v_perm_b32 v15, v{x+3}, v{x+2}, s56")
                a("v_or_b32 v14, v14, v15")
                a("v_cmp_ne_u32 vcc, v14, v122")
                a(f"s_cbranch_vccnz {n}")
                for r in range(4): a(f"v_fmac_f32 v{8+r}, v{x+r}, v{80+i}")
                a(f"s_bitset1_b32 s64, {i}")
                a(f"{n}:")
            a("s_cmp_eq_u32 s64, 15")
            a("s_cbranch_scc1 L_store")
        for b in bases[1:]: issue_set(b, False)
        a("s_mov_b32 s64, 0")
        for r in range(4): a(f"v_mov_b32 v{8+r}, 0")
        a("s_waitcnt lgkmcnt(0)")
        a("L_sweep:")
        for b in bases:
            a(f"s_waitcnt vmcnt({4*(nsets-1)})")
            proc(b)
            issue_set(b, True)
        a("s_add_u32 s51, s51, 1")
        a(f"s_cmp_lt_u32 s51, {SPIN}")
        a("s_cbranch_scc1 L_sweep")
    else:
        a("L_sweep:")
        a("s_waitcnt vmcnt(0) lgkmcnt(0)")
        for i in range(4):
            b = 24 + 4 * i
            a(f"v_perm_b32 v{40+2*i}, v{b+1}, v{b}, s62")
            a(f"v_perm_b32 v{41+2*i}, v{b+3}, v{b+2}, s56")
        for r in range(4): a(f"v_mul_f32 v{8+r}, v{24+r}, v80")
        for i in range(4):
            a(f"v_or_b32 v{40+2*i}, v{40+2*i}, v{41+2*i}")
        for i in range(1, 4):
            for r in range(4): a(f"v_fmac_f32 v{8+r}, v{24+4*i+r}, v{80+i}")
        for i in range(4):
            a(f"v_cmp_ne_u32 s[{64+2*i}:{65+2*i}], v{40+2*i}, v122")
        a("s_or_b64 s[48:49], s[64:65], s[66:67]")
        a("s_or_b64 s[48:49], s[48:49], s[68:69]")
        a("s_or_b64 s[48:49], s[48:49], s[70:71]")
        a("s_cbranch_scc0 L_store")
        a("s_add_u32 s51, s51, 1")
        a(f"s_cmp_ge_u32 s51, {SPIN}")
        a("s_cbranch_scc1 L_store")
        if sleep: a(f"s_sleep {sleep}")
        for i in range(4):
            if selre:
                a(f"s_cmp_eq_u64 s[{64+2*i}:{65+2*i}], 0")
                a(f"s_cbranch_scc1 L_skip{i}")
            a(f"buffer_load_dwordx4 v[{24+4*i}:{24+4*i+3}], v6, s[36:39], s61 offen offset:{i*1024}{ldfl}")
            if selre: a(f"L_skip{i}:")
        a("s_branch L_sweep")
    a("L_store:")
    stamp(6)
    if nsets > 0: a("s_nop 0")
    a("v_permlane32_swap_b32 v8, v10")
    a("v_permlane32_swap_b32 v9, v11")
    a("s_nop 1")
    a("v_add_f32 v8, v8, v10")
    a("v_add_f32 v9, v9, v11")
    a("s_nop 1")
    a("v_permlane16_swap_b32 v8, v9")
    a("s_nop 1")
    a("v_add_f32 v8, v8, v9")
    a("v_add_f32 v8, v8, v121")
    a("v_cvt_pk_bf16_f32 v8, v8, v8")
    a("buffer_store_short v8, v124, s[24:27], s63 offen" + outfl)
    a("s_branch L_fin")
    a("L_ml_late:")
    a("s_mov_b32 s51, 0")
    a("L_ml_loop:")
    a("buffer_load_dwordx4 v[60:63], v6, s[36:39], s60 offen sc1")
    a("s_waitcnt vmcnt(0)")
    a("v_cmp_ne_u64 vcc, v[62:63], v[122:123]")
    a("s_cbranch_vccz L_ml_ok")
    a("s_add_u32 s51, s51, 1")
    a(f"s_cmp_lt_u32 s51, {SPIN}")
    a("s_cbranch_scc1 L_ml_loop")
    a("L_ml_ok:")
    if stamps: a("s_add_u32 s72, s51, 1")
    a("v_and_b32 v14, 15, v61")
    a("v_cmp_ne_u32 vcc, s34, v14")
    if not force_slow: a("s_cbranch_vccz L_ml_w")
    a("s_barrier")
    a("s_waitcnt vmcnt(0)")
    a("buffer_wbl2 sc1")
    a("s_waitcnt vmcnt(0)")
    a("L_ml_w:")
    if swpos >= 0:
        for i in range(4):
            a(f"buffer_load_dwordx4 v[{24+4*i}:{24+4*i+3}], v6, s[36:39], s61 offen offset:{i*1024}{ldfl}")
    weights(a, "v60", "v61")
    a("s_branch L_local")
    a("L_nonce_slow:")
    a("s_mov_b32 s51, 0")
    a("s_and_b32 s47, s2, 3")
    a("s_lshl_b32 s47, s47, 6")
    a("v_mov_b32 v113, 0")
    a("L_nonce_loop:")
    a("buffer_load_dwordx2 v[122:123], v113, s[96:99], s47 offen sc1")
    a("s_waitcnt vmcnt(0)")
    a("v_readfirstlane_b32 s50, v122")
    a("s_cmp_lg_u32 s50, 0")
    a("s_cbranch_scc1 L_nonce_ok")
    a("s_add_u32 s51, s51, 1")
    a(f"s_cmp_lt_u32 s51, {SPIN}")
    a("s_cbranch_scc1 L_nonce_loop")
    a("s_branch L_nonce_ok")
    a("L_wdone:")
    a("s_waitcnt vmcnt(0)")
    a("L_fin:")
    if stamps:
        stamp(7)
        a("s_waitcnt vmcnt(0) lgkmcnt(0)")
        a("s_lshl_b32 s50, s2, 2")
        a("s_add_u32 s50, s50, s3")
        a("s_lshl_b32 s50, s50, 6")
        a(f"s_add_u32 s50, s50, {STAMP_BASE}")
        for j in range(8):
            a(f"v_mov_b32 v{8+j}, s{80+2*j}")
        for j, r in enumerate((22, 32, 32, 51, 72, 35, 35, 35)):
            a(f"v_mov_b32 v{16+j}, s{r}")
        a("s_getreg_b32 s35, hwreg(HW_REG_XCC_ID)")
        a("v_mov_b32 v23, s35")
        a("v_mov_b32 v1, 0")
        a("v_cmp_eq_u32 vcc, 0, v2")
        a("s_and_saveexec_b64 s[48:49], vcc")
        for j in range(4):
            a(f"buffer_store_dwordx4 v[{8+4*j}:{8+4*j+3}], v1, s[36:39], s50 offen offset:{16*j}")
    a("L_end:")
    a("s_endpgm")
    a('.section .rodata,"a"')
    a(".p2align 6")
    a(descriptor(KNAME, 384, 256))
    return a.text()

if __name__ == "__main__":
    import argparse
    ap = argparse.ArgumentParser()
    ap.add_argument("-o", default="g.s")
    ap.add_argument("--fl", default="nt")
    ap.add_argument("-W", type=int, default=20)
    ap.add_argument("--W0", type=int, default=32)
    ap.add_argument("--stamps", action="store_true")
    ap.add_argument("--noxcd", action="store_true")
    ap.add_argument("--vper", type=int, default=10)
    ap.add_argument("--gx", type=int, default=0)
    ap.add_argument("--ostfl", default="")
    ap.add_argument("--mlpos", type=int, default=0)
    ap.add_argument("--swpos", type=int, default=-1)
    ap.add_argument("--force_slow", action="store_true")
    ap.add_argument("--stfl", default="sc1")
    ap.add_argument("--ldfl", default="sc1")
    ap.add_argument("--outfl", default="")
    ap.add_argument("--nosel", action="store_true")
    ap.add_argument("--sleep", type=int, default=0)
    ap.add_argument("--nsets", type=int, default=0)
    x = ap.parse_args()
    sp = lambda s: (" " + s) if s else ""
    open(x.o, "w").write(gen(fl=sp(x.fl), W=x.W, W0=x.W0, stamps=x.stamps, xcd=not x.noxcd, vper=x.vper, stfl=sp(x.stfl), ldfl=sp(x.ldfl), gx=x.gx, outfl=sp(x.outfl), selre=not x.nosel, sleep=x.sleep, nsets=x.nsets, ostfl=sp(x.ostfl), force_slow=x.force_slow, mlpos=x.mlpos, swpos=x.swpos))
```

```python
import sys, math, struct
sys.path.insert(0, "gen")
from common import *

def f2u(x): return struct.unpack("<I", struct.pack("<f", x))[0]
LOG2E = 1.4426950408889634
SCALE = 128 ** -0.5
C_SL = SCALE * LOG2E

O_BASE = 0
ML_BASE = 1 << 20
MLA_OFF = 1 << 17
STAMP_BASE = 4 << 20
LDS_M = 0
LDS_N = 128
LDS_O = 256
ESTR = 1088
WSTR = 4 * ESTR
LDS_SIZE = LDS_O + 4 * WSTR
SPIN = 1 << 16


DOC = """;
;
;     (m, l) granule  {m, l | die id, tag lo, tag hi}   written twice: device-visible copy and same-die copy
"""

def cross_rows(a, op, v, t):
    a(f"v_mov_b32 {t}, {v}")
    a("s_nop 1")
    a(f"v_permlane16_swap_b32 {t}, {v}")
    a("s_nop 1")
    a(f"{op} {v}, {v}, {t}")
    a(f"v_mov_b32 {t}, {v}")
    a("s_nop 1")
    a(f"v_permlane32_swap_b32 {t}, {v}")
    a("s_nop 1")
    a(f"{op} {v}, {v}, {t}")

def wave_allreduce(a, op, v, t):
    for ctl in ("quad_perm:[1,0,3,2]", "quad_perm:[2,3,0,1]", "row_half_mirror", "row_mirror"):
        a("s_nop 1")
        a(f"{op}_dpp {v}, {v}, {v} {ctl} row_mask:0xf bank_mask:0xf")
    cross_rows(a, op, v, t)

class VM:
    def __init__(self, a): self.a = a; self.n = 0; self.tag = {}
    def op(self, text, tag=None):
        self.a(text); self.n += 1
        if tag: self.tag[tag] = self.n
    def wait(self, tag):
        left = self.n - self.tag[tag]
        assert left <= 63, left
        self.a(f"s_waitcnt vmcnt({left})")

def srd(a, base, lo, hi, size):
    a(f"s_mov_b32 s{base}, s{lo}")
    a(f"s_mov_b32 s{base+1}, s{hi}")
    a(f"s_mov_b32 s{base+2}, {size}")
    a(f"s_mov_b32 s{base+3}, 0x20000")

def row_allreduce(a, op, v):
    for ctl in ("quad_perm:[1,0,3,2]", "quad_perm:[2,3,0,1]", "row_half_mirror", "row_mirror"):
        a("s_nop 1")
        a(f"{op}_dpp {v}, {v}, {v} {ctl} row_mask:0xf bank_mask:0xf")

def weights(a, m, l, hook=None, pos=-1):
    if pos == 0: hook()
    a(f"v_max_f32 v8, {m}, v120")
    row_allreduce(a, "v_max_f32", "v8")
    if pos == 1: hook()
    a(f"v_sub_f32 v10, {m}, v8")
    a("v_sub_f32 v11, v120, v8")
    a("v_exp_f32 v10, v10")
    a("v_exp_f32 v11, v11")
    a("s_nop 0")
    a(f"v_mul_f32 v12, v10, {l}")
    wave_allreduce(a, "v_add_f32", "v12", "v9")
    if pos == 2: hook()
    a("v_add_f32 v12, v12, v11")
    a("v_rcp_f32 v12, v12")
    a("s_nop 0")
    a("v_mul_f32 v13, v10, v12")
    a("v_mul_f32 v11, v11, v12")
    a("v_mul_f32 v121, v11, v121")

def gen(fl=" nt", W=20, W0=32, stamps=False, xcd=True, vper=10, stfl=" sc1", ldfl=" sc1", gx=0, outfl="", selre=True, sleep=0, nsets=0, ostfl="", force_slow=False, mlpos=0, swpos=-1, thr=0, mlall=-1):
    a = Asm()
    a(HEADER.rstrip("\n"))
    a(f"; @launch grid=(256,1,1) block=(256,1,1) lds={LDS_SIZE}")
    a(DOC.rstrip("\n"))
    a('.amdgcn_target "amdgcn-amd-amdhsa--gfx950"')
    a(".text")
    kernel_begin(a, KNAME)
    vm = VM(a)
    def stamp(i):
        if stamps: a(f"s_memrealtime s[{80+2*i}:{81+2*i}]")
    stamp(0)
    a("s_cmp_ge_u32 s2, 256")
    a("s_cbranch_scc1 L_end")
    a("s_load_dwordx16 s[4:19], s[0:1], 0")
    a("s_memrealtime s[22:23]")
    a("v_lshrrev_b32 v1, 6, v0")
    a("v_and_b32 v2, 63, v0")
    a("v_readfirstlane_b32 s3, v1")
    a("v_and_b32 v3, 15, v2")
    a("v_lshrrev_b32 v4, 4, v2")
    a("v_lshrrev_b32 v5, 2, v3")
    a("v_lshlrev_b32 v5, 8, v5")
    a("v_and_b32 v6, 3, v3")
    a("v_lshl_add_u32 v5, v6, 4, v5")
    a("v_lshl_add_u32 v5, v4, 6, v5")
    a("v_lshlrev_b32 v6, 4, v2")
    a("v_and_b32 v7, 7, v3")
    a("v_lshlrev_b32 v7, 8, v7")
    a("v_lshl_add_u32 v7, v4, 6, v7")
    a("v_mov_b32 v124, 0")
    if xcd:
        a("s_and_b32 s50, s2, 7")
        a("s_lshl_b32 s50, s50, 5")
        a("s_lshr_b32 s51, s2, 3")
        a("s_add_u32 s34, s50, s51")
    else:
        a("s_mov_b32 s34, s2")
    a("s_lshr_b32 s52, s34, 4")
    a("s_and_b32 s53, s34, 15")
    a("s_lshl_b32 s32, s34, 17")
    a("s_lshl_b32 s33, s3, 10")
    a("s_mov_b32 s35, s33")
    a("s_lshl_b32 s54, s52, 11")
    a("s_mov_b32 s26, 0x20000")
    a("s_mov_b32 s27, 0x20000")
    a("s_mov_b32 s42, 2048")
    a("s_mov_b32 s43, 0x20000")
    a("s_mov_b32 s30, 0x20000")
    a("s_mov_b32 s31, 0x20000")
    a("s_waitcnt lgkmcnt(0)")
    a("s_add_u32 s24, s6, s32")
    a("s_addc_u32 s25, s7, 0")
    QB = 8
    VB = 128
    seq = [("k", i) for i in range(32)] + [("v", i) for i in range(32)]
    issued = [0]
    limit = [64]
    throttle = [False]
    def issue(n=1):
        for _ in range(n):
            if issued[0] >= min(len(seq), limit[0]): return
            kind, idx = seq[issued[0]]
            if kind == "k":
                vm.op(f"buffer_load_dwordx4 a[{idx*4}:{idx*4+3}], v5, s[24:27], s35 offen{fl}", f"k{idx}")
                if idx < 31: a("s_add_u32 s35, s35, 4096")
            else:
                if thr and throttle[0]: a(f"s_waitcnt vmcnt({thr-1})")
                vm.op(f"buffer_load_dwordx4 v[{VB+idx*4}:{VB+idx*4+3}], v6, s[28:31], s33 offen{fl}", f"v{idx}")
                if idx < 31: a("s_add_u32 s33, s33, 4096")
            issued[0] += 1
    issue(1)
    a("s_add_u32 s40, s4, s54")
    a("s_addc_u32 s41, s5, 0")
    for c in range(4):
        vm.op(f"buffer_load_dwordx4 v[{QB+4*c}:{QB+4*c+3}], v7, s[40:43], 0 offen offset:{c*16}", f"q{c}")
    a("s_load_dwordx2 s[20:21], s[0:1], 64")
    a("s_add_u32 s28, s8, s32")
    a("s_addc_u32 s29, s9, 0")
    srd(a, 96, 18, 19, 256)
    a("s_or_b32 s50, s2, s3")
    a("s_cmp_lg_u32 s50, 0")
    a("s_cbranch_scc1 L_no_nonce")
    a("s_or_b32 s22, s22, 1")
    a("v_mov_b32 v60, s22")
    a("v_mov_b32 v61, s23")
    a("v_lshlrev_b32 v62, 6, v2")
    a("v_cmp_gt_u32 vcc, 4, v2")
    a("s_and_saveexec_b64 s[48:49], vcc")
    a("buffer_store_dwordx2 v[60:61], v62, s[96:99], 0 offen sc0 sc1")
    a("s_mov_b64 exec, s[48:49]")
    a("L_no_nonce:")
    issue(min(W0, 32) - 1)
    a("s_waitcnt lgkmcnt(0)")
    srd(a, 36, 20, 21, "0x10000000")
    a(f"s_mov_b32 s44, {f2u(C_SL):#x}")
    a("s_mov_b32 s45, 0x05040100")
    a("s_mov_b32 s46, 0x07060302")
    a("s_movk_i32 s101, 0xff")
    a("s_getreg_b32 s34, hwreg(HW_REG_XCC_ID, 0, 4)")
    a("s_lshr_b32 s57, s53, 1")
    a("s_and_b32 s58, s53, 1")
    a(f"s_xor_b32 s100, s52, {gx}")
    a("s_lshl_b32 s59, s100, 3")
    a("s_add_u32 s59, s59, s57")
    a("s_cmp_lg_u32 s3, 0")
    a("s_cbranch_scc1 L_no_tree")
    a("v_lshlrev_b32 v112, 2, v2")
    a("v_mov_b32 v113, 0")
    a("v_and_b32 v124, 7, v2")
    a("v_and_b32 v115, 8, v2")
    a("v_lshl_add_u32 v124, v115, 2, v124")
    a("v_lshl_add_u32 v124, v4, 3, v124")
    a("v_lshlrev_b32 v124, 1, v124")
    srd(a, 64, 4, 5, 32768)
    a("s_lshl_b32 s60, s59, 8")
    a("buffer_load_dword v116, v112, s[64:67], s60 offen")
    srd(a, 68, 10, 11, 4096)
    a("s_lshl_b32 s61, s100, 8")
    a("buffer_load_dword v117, v112, s[68:71], s61 offen")
    srd(a, 72, 12, 13, 4096)
    a("s_lshl_b32 s62, s58, 7")
    a("s_add_u32 s62, s62, s61")
    a("buffer_load_ushort v118, v124, s[72:75], s62 offen")
    srd(a, 76, 14, 15, 8)
    a("s_lshr_b32 s63, s100, 2")
    a("s_lshl_b32 s63, s63, 1")
    a("buffer_load_ushort v119, v113, s[76:79], s63 offen")
    a("L_no_tree:")
    if W0 > 32: issue(W0 - 32)
    SB = 24
    TB = 64
    def adds(n):
        t = TB + 16 * (n & 1)
        a(f"v_add_f32 v{SB+n}, v{t}, v{t+5}")
        a(f"v_add_f32 v{t+10}, v{t+10}, v{t+15}")
        a(f"v_add_f32 v{SB+n}, v{SB+n}, v{t+10}")
    for n in range(32):
        vm.wait(f"k{n}" if n > 0 else "q3")
        if n == 0: stamp(1)
        t = TB + 16 * (n & 1)
        for c in range(4):
            a(f"v_mfma_f32_16x16x32_bf16 v[{t+4*c}:{t+4*c+3}], a[{n*4}:{n*4+3}], v[{QB+4*c}:{QB+4*c+3}], 0")
        if issued[0] - (n + 1) < W: issue(1)
        else: a("s_nop 1")
        if n == 20:
            a("s_cmp_lg_u32 s3, 0")
            a("s_cbranch_scc1 L_no_nl")
            a("s_and_b32 s50, s2, 3")
            a("s_lshl_b32 s50, s50, 6")
            a("v_mov_b32 v113, 0")
            a("buffer_load_dwordx2 v[122:123], v113, s[96:99], s50 offen sc1")
            a("L_no_nl:")
            nonce_after = issued[0]
        if n >= 1: adds(n - 1)
    stamp(2)
    throttle[0] = True
    a("s_nop 4")
    adds(31)
    cnt = [0]
    def V(text):
        a(text); cnt[0] += 1
        if cnt[0] % vper == 0: issue(1)
    M = "v56"; T = "v57"
    V(f"v_max3_f32 {M}, v{SB}, v{SB+1}, v{SB+2}")
    r = 3
    while r < 32:
        if r + 1 < 32:
            V(f"v_max3_f32 {M}, {M}, v{SB+r}, v{SB+r+1}"); r += 2
        else:
            V(f"v_max_f32 {M}, {M}, v{SB+r}"); r += 1
    cross_rows(a, "v_max_f32", M, T)
    a("v_and_b32 v58, 7, v3")
    a("v_lshlrev_b32 v58, 4, v58")
    a("s_lshl_b32 s47, s3, 2")
    a("v_add_u32 v59, s47, v58")
    a("v_cmp_gt_u32 vcc, 8, v2")
    a("s_and_saveexec_b64 s[48:49], vcc")
    a(f"ds_write_b32 v59, {M} offset:{LDS_M}")
    a("s_mov_b64 exec, s[48:49]")
    a("s_cmp_lg_u32 s3, 0")
    a("s_cbranch_scc1 L_no_nw")
    assert issued[0] > nonce_after
    kind, idx = seq[nonce_after]
    vm.wait(f"{kind}{idx}")
    a("L_nonce_chk:")
    a("v_readfirstlane_b32 s50, v122")
    a("s_cmp_eq_u32 s50, 0")
    a("s_cbranch_scc1 L_nonce_slow")
    a("L_nonce_ok:")
    a("v_mov_b32 v59, 0")
    a(f"ds_write_b64 v59, v[122:123] offset:{LDS_N}")
    a("v_lshlrev_b32 v120, 16, v116")
    a("v_and_b32 v121, 0xffff0000, v116")
    a("v_lshlrev_b32 v126, 16, v117")
    a("v_and_b32 v127, 0xffff0000, v117")
    a("v_mul_f32 v120, v120, v126")
    a("v_fmac_f32 v120, v121, v127")
    wave_allreduce(a, "v_add_f32", "v120", "v121")
    a("v_lshlrev_b32 v119, 16, v119")
    a("v_sub_f32 v119, 1.0, v119")
    a(f"v_mul_f32 v119, {f2u(-1e9*LOG2E):#x}, v119")
    a("v_fma_f32 v120, v120, s44, v119")
    a("v_lshlrev_b32 v121, 16, v118")
    a("L_no_nw:")
    a("s_waitcnt lgkmcnt(0)")
    a("s_barrier")
    a(f"ds_read_b128 v[60:63], v58 offset:{LDS_M}")
    a("v_mov_b32 v59, 0")
    a(f"ds_read_b64 v[122:123], v59 offset:{LDS_N}")
    issue(1)
    a("s_waitcnt lgkmcnt(0)")
    a("v_max3_f32 v60, v60, v61, v62")
    a(f"v_max_f32 {M}, v60, v63")
    a(f"v_mul_f32 {M}, s44, {M}")
    a("v_mov_b32 v116, v122")
    a("v_lshrrev_b32 v117, 8, v122")
    a("v_lshrrev_b32 v118, 16, v122")
    a("v_lshrrev_b32 v119, 24, v122")
    for r in range(32):
        V(f"v_fma_f32 v{SB+r}, v{SB+r}, s44, -{M}")
    for r in range(32):
        V(f"v_exp_f32 v{SB+r}, v{SB+r}")
    a("s_nop 0")
    L = "v57"; T2 = "v58"
    V(f"v_add_f32 v60, v{SB}, v{SB+1}")
    V(f"v_add_f32 v61, v{SB+2}, v{SB+3}")
    for r in range(4, 32, 2):
        V(f"v_add_f32 v60, v60, v{SB+r}")
        V(f"v_add_f32 v61, v61, v{SB+r+1}")
    V(f"v_add_f32 {L}, v60, v61")
    cross_rows(a, "v_add_f32", L, T2)
    a("s_lshl_b32 s56, s52, 13")
    a("s_sub_u32 s50, s53, s3")
    a("s_and_b32 s50, s50, 15")
    a("s_lshl_b32 s50, s50, 4")
    a("s_add_u32 s56, s56, s50")
    a("s_lshl_b32 s50, s3, 8")
    a("s_add_u32 s56, s56, s50")
    a(f"s_add_u32 s56, s56, {ML_BASE}")
    a("v_lshlrev_b32 v59, 10, v2")
    a(f"v_mov_b32 v60, {M}")
    a(f"v_bfi_b32 v61, 15, s34, {L}")
    a("v_mov_b32 v62, v122"); a("v_mov_b32 v63, v123")
    a("v_cmp_gt_u32 vcc, 8, v2")
    a("s_and_saveexec_b64 s[48:49], vcc")
    a(f"s_add_u32 s50, s56, {MLA_OFF}")
    vm.op("buffer_store_dwordx4 v[60:63], v59, s[36:39], s50 offen" + ostfl)
    vm.op("buffer_store_dwordx4 v[60:63], v59, s[36:39], s56 offen" + stfl)
    a("s_mov_b64 exec, s[48:49]")
    PL, PH = 64, 80
    for t in range(16):
        V(f"v_cvt_pk_bf16_f32 v{PL+t}, v{SB+2*t}, v{SB+2*t+1}")
    a("v_cmp_gt_u32 vcc, 8, v3")
    a("s_nop 1")
    a("v_cndmask_b32 v60, 0, -1, vcc")
    a("v_not_b32 v61, v60")
    for r in range(16):
        V(f"v_and_b32 v{PH+r}, v61, v{PL+r}")
    for r in range(16):
        V(f"v_and_b32 v{PL+r}, v60, v{PL+r}")
    issue(64)
    stamp(3)
    if stamps: a("s_mov_b32 s72, 0")
    a("s_mul_i32 s47, s3, %d" % WSTR)
    a("v_add_u32 v58, s47, v6")
    a("v_and_b32 v59, 3, v2")
    a(f"v_mul_u32_u24 v59, {ESTR}, v59")
    a("v_lshrrev_b32 v62, 3, v2")
    a("v_and_b32 v63, 4, v2")
    a("v_lshl_add_u32 v63, v63, 1, v62")
    a("s_lshl_b32 s47, s3, 4")
    a("v_add_u32 v63, s47, v63")
    a("v_lshl_add_u32 v59, v63, 4, v59")
    a("v_and_b32 v1, 7, v2")
    a("v_lshlrev_b32 v1, 4, v1")
    a("v_lshl_add_u32 v1, v62, 13, v1")
    a("s_lshl_b32 s55, s52, 4")
    a("s_lshr_b32 s50, s3, 1")
    a("s_add_u32 s55, s55, s50")
    a("s_lshl_b32 s55, s55, 4")
    a("s_add_u32 s55, s55, s53")
    a("s_lshl_b32 s55, s55, 8")
    a("s_and_b32 s50, s3, 1")
    a("s_lshl_b32 s50, s50, 7")
    a("s_add_u32 s55, s55, s50")
    a("s_lshl_b32 s60, s59, 10")
    a(f"s_add_u32 s60, s60, {ML_BASE}")
    a("s_lshl_b32 s61, s100, 4")
    a("s_add_u32 s61, s61, s53")
    a("s_lshl_b32 s61, s61, 12")
    a("s_lshl_b32 s63, s59, 8")
    a("s_lshl_b32 s50, s58, 7")
    a("s_add_u32 s63, s63, s50")
    a("s_mov_b32 s62, 0x0c0c0400")
    a("s_mov_b32 s56, 0x04000c0c")
    srd(a, 24, 16, 17, 32768)
    AC = 96
    TP = 8
    ops = [(ep, half) for ep in range(4) for half in range(2)]
    for u in range(3):
        vm.wait(f"v{8*u+7}")
        first = (u == 0)
        def perms(k):
            ep, half = ops[k]
            e = ep + 4 * half
            dw, hi = e >> 1, e & 1
            sel = "s46" if hi else "s45"
            tb = TP + 4 * (k & 3)
            for qq in range(4):
                r0 = VB + (8 * u + 2 * qq) * 4 + dw
                r1 = VB + (8 * u + 2 * qq + 1) * 4 + dw
                a(f"v_perm_b32 v{tb+qq}, v{r1}, v{r0}, {sel}")
        def mfma(k):
            ep, half = ops[k]
            tb = TP + 4 * (k & 3)
            pb = (PH if half else PL) + 4 * u
            c = "0" if (first and half == 0) else f"v[{AC+4*ep}:{AC+4*ep+3}]"
            a(f"v_mfma_f32_16x16x32_bf16 v[{AC+4*ep}:{AC+4*ep+3}], v[{tb}:{tb+3}], v[{pb}:{pb+3}], {c}")
        perms(0)
        perms(1)
        for k in range(8):
            mfma(k)
            if k + 2 < 8: perms(k + 2)
            if k == 6: a("s_nop 0")
    u = 3
    TQ = 24
    def perm1(k, qq):
        ep, half = ops[k]
        e = ep + 4 * half
        dw, hi = e >> 1, e & 1
        sel = "s46" if hi else "s45"
        r0 = VB + (8 * u + 2 * qq) * 4 + dw
        r1 = VB + (8 * u + 2 * qq + 1) * 4 + dw
        a(f"v_perm_b32 v{TQ+4*k+qq}, v{r1}, v{r0}, {sel}")
    def mf(k):
        ep, half = ops[k]
        pb = (PH if half else PL) + 4 * u
        a(f"v_mfma_f32_16x16x32_bf16 v[{AC+4*ep}:{AC+4*ep+3}], v[{TQ+4*k}:{TQ+4*k+3}], v[{pb}:{pb+3}], v[{AC+4*ep}:{AC+4*ep+3}]")
    if mlall >= 0: a(f"s_add_u32 s50, s60, {MLA_OFF}")
    for qq in range(3):
        if mlall == qq:
            vm.op("buffer_load_dwordx4 v[60:63], v6, s[36:39], s50 offen sc1", "ml")
        vm.wait(f"v{8*u+2*qq+1}")
        for k in range(8): perm1(k, qq)
    if mlall == 3:
        vm.op("buffer_load_dwordx4 v[60:63], v6, s[36:39], s50 offen sc1", "ml")
    if mlall < 0:
        a("s_cmp_lg_u32 s3, 0")
    vm.wait(f"v{8*u+7}")
    stamp(4)
    if mlall < 0:
        a("s_cbranch_scc1 L_no_ml")
        a(f"s_add_u32 s50, s60, {MLA_OFF}")
        a("buffer_load_dwordx4 v[60:63], v6, s[36:39], s50 offen sc1")
        a("L_no_ml:")
    perm1(0, 3); perm1(1, 3); perm1(2, 3)
    mf(0); perm1(3, 3)
    mf(1); perm1(4, 3)
    mf(2); perm1(5, 3)
    mf(3); perm1(6, 3); perm1(7, 3)
    mf(4)
    mf(5)
    a("s_nop 1")
    a(f"ds_write_b128 v58, v[{AC}:{AC+3}] offset:{LDS_O}")
    mf(6)
    mf(7)
    a("s_nop 1")
    a(f"ds_write_b128 v58, v[{AC+4}:{AC+7}] offset:{LDS_O+ESTR}")
    a("s_nop 1")
    a(f"ds_write_b128 v58, v[{AC+8}:{AC+11}] offset:{LDS_O+2*ESTR}")
    a("s_nop 1")
    a(f"ds_write_b128 v58, v[{AC+12}:{AC+15}] offset:{LDS_O+3*ESTR}")
    a("s_waitcnt lgkmcnt(0)")
    a("s_barrier")
    for w in range(4):
        a(f"ds_read_b128 v[{64+4*w}:{64+4*w+3}], v59 offset:{LDS_O+w*WSTR}")
    a("s_waitcnt lgkmcnt(2)")
    for r in range(4): a(f"v_add_f32 v{64+r}, v{64+r}, v{68+r}")
    a("s_waitcnt lgkmcnt(0)")
    for r in range(4): a(f"v_add_f32 v{72+r}, v{72+r}, v{76+r}")
    for r in range(4): a(f"v_add_f32 v{112+r}, v{64+r}, v{72+r}")
    for r in range(4): a(f"v_bfi_b32 v{112+r}, s101, v{116+r}, v{112+r}")
    vm.op("buffer_store_dwordx4 v[112:115], v1, s[36:39], s55 offen" + ostfl)
    stamp(5)
    a("s_cmp_lg_u32 s3, 0")
    a("s_cbranch_scc1 L_wdone")
    def first_sweep():
        for i in range(4):
            a(f"buffer_load_dwordx4 v[{24+4*i}:{24+4*i+3}], v6, s[36:39], s61 offen offset:{i*1024}{ldfl}")
    if swpos < 0:
        first_sweep()
        a("s_waitcnt vmcnt(5)")
    else:
        a("s_waitcnt vmcnt(1)")
    a("v_cmp_ne_u64 vcc, v[62:63], v[122:123]")
    a("s_cbranch_vccnz L_ml_late")
    a("v_and_b32 v14, 15, v61")
    a("v_cmp_ne_u32 vcc, s34, v14")
    if force_slow: a("s_branch L_ml_late")
    a("s_cbranch_vccnz L_ml_late")
    weights(a, "v60", "v61", first_sweep, swpos)
    a("L_local:")
    if stamps: a("s_memrealtime s[22:23]")
    if stamps: a("s_memrealtime s[32:33]")
    a("s_mov_b32 s51, 0")
    if nsets < 0:
        bases = [24, 40, 128][:-nsets]
        def sweep(b):
            for i in range(4):
                a(f"buffer_load_dwordx4 v[{b+4*i}:{b+4*i+3}], v6, s[36:39], s61 offen offset:{i*1024}{ldfl}")
        def check(b):
            for i in range(4):
                x = b + 4 * i
                a(f"v_perm_b32 v{16+2*i}, v{x+1}, v{x}, s62")
                a(f"v_perm_b32 v{17+2*i}, v{x+3}, v{x+2}, s56")
            for r in range(4): a(f"v_mul_f32_dpp v{8+r}, v13, v{b+r} row_newbcast:0 row_mask:0xf bank_mask:0xf")
            for i in range(4): a(f"v_or_b32 v{16+2*i}, v{16+2*i}, v{17+2*i}")
            for i in range(1, 4):
                for r in range(4): a(f"v_fmac_f32_dpp v{8+r}, v13, v{b+4*i+r} row_newbcast:{4*i} row_mask:0xf bank_mask:0xf")
            a("v_xor_b32 v16, v16, v122")
            a("v_xor_b32 v18, v18, v122")
            a("v_xor_b32 v20, v20, v122")
            a("v_xor_b32 v22, v22, v122")
            a("v_or3_b32 v16, v16, v18, v20")
            a("v_or_b32 v16, v16, v22")
            a("v_cmp_ne_u32 vcc, 0, v16")
            a("s_cbranch_vccz L_store")
        for b in bases[1:]: sweep(b)
        a("s_waitcnt lgkmcnt(0)")
        a("L_sweep:")
        for b in bases:
            a(f"s_waitcnt vmcnt({4*(len(bases)-1)})")
            check(b)
            sweep(b)
        a("s_add_u32 s51, s51, 1")
        a(f"s_cmp_lt_u32 s51, {SPIN}")
        a("s_cbranch_scc1 L_sweep")
    elif nsets:
        bases = [24, 40, 128, 144][:nsets]
        def issue_set(b, masked):
            for i in range(4):
                if masked:
                    a(f"s_bitcmp1_b32 s64, {i}")
                    a("s_cselect_b64 exec, 1, -1")
                a(f"buffer_load_dwordx4 v[{b+4*i}:{b+4*i+3}], v6, s[36:39], s61 offen offset:{i*1024}{ldfl}")
            if masked: a("s_mov_b64 exec, -1")
        lab = [0]
        def proc(b):
            for i in range(4):
                lab[0] += 1
                n = f"L_n{lab[0]}"
                x = b + 4 * i
                a(f"s_bitcmp1_b32 s64, {i}")
                a(f"s_cbranch_scc1 {n}")
                a(f"v_perm_b32 v14, v{x+1}, v{x}, s62")
                a(f"v_perm_b32 v15, v{x+3}, v{x+2}, s56")
                a("v_or_b32 v14, v14, v15")
                a("v_cmp_ne_u32 vcc, v14, v122")
                a(f"s_cbranch_vccnz {n}")
                for r in range(4): a(f"v_fmac_f32 v{8+r}, v{x+r}, v{80+i}")
                a(f"s_bitset1_b32 s64, {i}")
                a(f"{n}:")
            a("s_cmp_eq_u32 s64, 15")
            a("s_cbranch_scc1 L_store")
        for b in bases[1:]: issue_set(b, False)
        a("s_mov_b32 s64, 0")
        for r in range(4): a(f"v_mov_b32 v{8+r}, 0")
        a("s_waitcnt lgkmcnt(0)")
        a("L_sweep:")
        for b in bases:
            a(f"s_waitcnt vmcnt({4*(nsets-1)})")
            proc(b)
            issue_set(b, True)
        a("s_add_u32 s51, s51, 1")
        a(f"s_cmp_lt_u32 s51, {SPIN}")
        a("s_cbranch_scc1 L_sweep")
    else:
        a("L_sweep:")
        a("s_waitcnt vmcnt(0) lgkmcnt(0)")
        for i in range(4):
            b = 24 + 4 * i
            a(f"v_perm_b32 v{40+2*i}, v{b+1}, v{b}, s62")
            a(f"v_perm_b32 v{41+2*i}, v{b+3}, v{b+2}, s56")
        for r in range(4): a(f"v_mul_f32_dpp v{8+r}, v13, v{24+r} row_newbcast:0 row_mask:0xf bank_mask:0xf")
        for i in range(4):
            a(f"v_or_b32 v{40+2*i}, v{40+2*i}, v{41+2*i}")
        for i in range(1, 4):
            for r in range(4): a(f"v_fmac_f32_dpp v{8+r}, v13, v{24+4*i+r} row_newbcast:{4*i} row_mask:0xf bank_mask:0xf")
        for i in range(4):
            a(f"v_cmp_ne_u32 s[{64+2*i}:{65+2*i}], v{40+2*i}, v122")
        a("s_or_b64 s[48:49], s[64:65], s[66:67]")
        a("s_or_b64 s[48:49], s[48:49], s[68:69]")
        a("s_or_b64 s[48:49], s[48:49], s[70:71]")
        a("s_cbranch_scc0 L_store")
        a("s_add_u32 s51, s51, 1")
        a(f"s_cmp_ge_u32 s51, {SPIN}")
        a("s_cbranch_scc1 L_store")
        if sleep: a(f"s_sleep {sleep}")
        for i in range(4):
            if selre:
                a(f"s_cmp_eq_u64 s[{64+2*i}:{65+2*i}], 0")
                a(f"s_cbranch_scc1 L_skip{i}")
            a(f"buffer_load_dwordx4 v[{24+4*i}:{24+4*i+3}], v6, s[36:39], s61 offen offset:{i*1024}{ldfl}")
            if selre: a(f"L_skip{i}:")
        a("s_branch L_sweep")
    a("L_store:")
    stamp(6)
    if nsets > 0: a("s_nop 0")
    a("v_permlane32_swap_b32 v8, v10")
    a("v_permlane32_swap_b32 v9, v11")
    a("s_nop 1")
    a("v_add_f32 v8, v8, v10")
    a("v_add_f32 v9, v9, v11")
    a("s_nop 1")
    a("v_permlane16_swap_b32 v8, v9")
    a("s_nop 1")
    a("v_add_f32 v8, v8, v9")
    a("v_add_f32 v8, v8, v121")
    a("v_cvt_pk_bf16_f32 v8, v8, v8")
    a("buffer_store_short v8, v124, s[24:27], s63 offen" + outfl)
    a("s_branch L_fin")
    a("L_ml_late:")
    a("s_mov_b32 s51, 0")
    a("L_ml_loop:")
    a("buffer_load_dwordx4 v[60:63], v6, s[36:39], s60 offen sc1")
    a("s_waitcnt vmcnt(0)")
    a("v_cmp_ne_u64 vcc, v[62:63], v[122:123]")
    a("s_cbranch_vccz L_ml_ok")
    a("s_add_u32 s51, s51, 1")
    a(f"s_cmp_lt_u32 s51, {SPIN}")
    a("s_cbranch_scc1 L_ml_loop")
    a("L_ml_ok:")
    if stamps: a("s_add_u32 s72, s51, 1")
    a("v_and_b32 v14, 15, v61")
    a("v_cmp_ne_u32 vcc, s34, v14")
    if not force_slow: a("s_cbranch_vccz L_ml_w")
    a("s_barrier")
    a("s_waitcnt vmcnt(0)")
    a("buffer_wbl2 sc1")
    a("s_waitcnt vmcnt(0)")
    a("L_ml_w:")
    if swpos >= 0:
        for i in range(4):
            a(f"buffer_load_dwordx4 v[{24+4*i}:{24+4*i+3}], v6, s[36:39], s61 offen offset:{i*1024}{ldfl}")
    weights(a, "v60", "v61")
    a("s_branch L_local")
    a("L_nonce_slow:")
    a("s_mov_b32 s51, 0")
    a("s_and_b32 s47, s2, 3")
    a("s_lshl_b32 s47, s47, 6")
    a("v_mov_b32 v113, 0")
    a("L_nonce_loop:")
    a("buffer_load_dwordx2 v[122:123], v113, s[96:99], s47 offen sc1")
    a("s_waitcnt vmcnt(0)")
    a("v_readfirstlane_b32 s50, v122")
    a("s_cmp_lg_u32 s50, 0")
    a("s_cbranch_scc1 L_nonce_ok")
    a("s_add_u32 s51, s51, 1")
    a(f"s_cmp_lt_u32 s51, {SPIN}")
    a("s_cbranch_scc1 L_nonce_loop")
    a("s_branch L_nonce_ok")
    a("L_wdone:")
    a("s_waitcnt vmcnt(0)")
    a("L_fin:")
    if stamps:
        stamp(7)
        a("s_waitcnt vmcnt(0) lgkmcnt(0)")
        a("s_lshl_b32 s50, s2, 2")
        a("s_add_u32 s50, s50, s3")
        a("s_lshl_b32 s50, s50, 6")
        a(f"s_add_u32 s50, s50, {STAMP_BASE}")
        for j in range(8):
            a(f"v_mov_b32 v{8+j}, s{80+2*j}")
        for j, r in enumerate((22, 32, 32, 51, 72, 35, 35, 35)):
            a(f"v_mov_b32 v{16+j}, s{r}")
        a("s_getreg_b32 s35, hwreg(HW_REG_XCC_ID)")
        a("v_mov_b32 v23, s35")
        a("v_mov_b32 v1, 0")
        a("v_cmp_eq_u32 vcc, 0, v2")
        a("s_and_saveexec_b64 s[48:49], vcc")
        for j in range(4):
            a(f"buffer_store_dwordx4 v[{8+4*j}:{8+4*j+3}], v1, s[36:39], s50 offen offset:{16*j}")
    a("L_end:")
    a("s_endpgm")
    a('.section .rodata,"a"')
    a(".p2align 6")
    a(descriptor(KNAME, 384, 256))
    return a.text()

if __name__ == "__main__":
    import argparse
    ap = argparse.ArgumentParser()
    ap.add_argument("-o", default="g.s")
    ap.add_argument("--fl", default="nt")
    ap.add_argument("-W", type=int, default=20)
    ap.add_argument("--W0", type=int, default=32)
    ap.add_argument("--stamps", action="store_true")
    ap.add_argument("--noxcd", action="store_true")
    ap.add_argument("--vper", type=int, default=10)
    ap.add_argument("--gx", type=int, default=0)
    ap.add_argument("--ostfl", default="")
    ap.add_argument("--mlpos", type=int, default=0)
    ap.add_argument("--swpos", type=int, default=-1)
    ap.add_argument("--thr", type=int, default=0)
    ap.add_argument("--mlall", type=int, default=-1)
    ap.add_argument("--force_slow", action="store_true")
    ap.add_argument("--stfl", default="sc1")
    ap.add_argument("--ldfl", default="sc1")
    ap.add_argument("--outfl", default="")
    ap.add_argument("--nosel", action="store_true")
    ap.add_argument("--sleep", type=int, default=0)
    ap.add_argument("--nsets", type=int, default=0)
    x = ap.parse_args()
    sp = lambda s: (" " + s) if s else ""
    open(x.o, "w").write(gen(fl=sp(x.fl), W=x.W, W0=x.W0, stamps=x.stamps, xcd=not x.noxcd, vper=x.vper, stfl=sp(x.stfl), ldfl=sp(x.ldfl), gx=x.gx, outfl=sp(x.outfl), selre=not x.nosel, sleep=x.sleep, nsets=x.nsets, ostfl=sp(x.ostfl), force_slow=x.force_slow, mlpos=x.mlpos, swpos=x.swpos, thr=x.thr, mlall=x.mlall))
```
